```python
import torch

def _softmax(x, axis=-1):
    return torch.softmax(x, dim=axis)
def _gelu(x):
    return torch.nn.functional.gelu(x, approximate="tanh")
def _silu(x):
    return torch.nn.functional.silu(x)
def _sigmoid(x):
    return torch.sigmoid(x)
def _layernorm(x, axis=-1, eps=1e-5):
    m = x.mean(dim=axis, keepdim=True)
    v = x.var(dim=axis, keepdim=True, unbiased=False)
    return (x - m) / torch.sqrt(v + eps)
def _scatter_add(tgt, idx, src, axis=0):
    return tgt.clone().index_add_(axis, idx, src)
def _segment_sum(src, seg, n):
    out = torch.zeros((n,) + src.shape[1:], dtype=src.dtype)
    return out.index_add_(0, seg, src)
def _pad(x, pw):
    flat = tuple(v for pair in reversed(pw) for v in pair)
    return torch.nn.functional.pad(x, flat)

kernel_name = 'parallel_sum__ssm_conv_s5__dense_activation_gelu__prompt'

def setup_inputs():

    _w = (lambda a: (lambda t: t.to(torch.bfloat16) if t.is_floating_point() else t)(torch.as_tensor(a)))
    def _A_setup():
        B, S, D = 1, 2048, 512
        P = D
        Lambda_re = -0.5 * (lambda _x: torch.exp(torch.as_tensor(_x)))((lambda *s: torch.randn(*s, dtype=torch.bfloat16) * 0.2)(P))
        Lambda_im = (lambda *s: torch.randn(*s, dtype=torch.bfloat16) * 0.8)(P) * 1.0
        B_re = (lambda *s: torch.randn(*s, dtype=torch.bfloat16) * 0.4)(P, D) * (D ** -0.5)
        B_im = (lambda *s: torch.randn(*s, dtype=torch.bfloat16) * 0.4)(P, D) * (D ** -0.5)
        C_re = (lambda *s: torch.randn(*s, dtype=torch.bfloat16) * 0.4)(D, P) * (P ** -0.5)
        C_im = (lambda *s: torch.randn(*s, dtype=torch.bfloat16) * 0.4)(D, P) * (P ** -0.5)
        log_dt = (lambda *s: torch.randn(*s, dtype=torch.bfloat16) * 0.2)(P) * 0.3 - 2.0
        Dskip = (lambda *s: torch.randn(*s, dtype=torch.bfloat16) * 0.05)(D)
        return {
            "x": _w((lambda *s: torch.randn(*s, dtype=torch.bfloat16) * 0.05)(B, S, D)),
            "Lambda_re": _w(Lambda_re),
            "Lambda_im": _w(Lambda_im),
            "B_re": _w(B_re),
            "B_im": _w(B_im),
            "C_re": _w(C_re),
            "C_im": _w(C_im),
            "log_dt": _w(log_dt),
            "Dskip": _w(Dskip),
        }
    _A_in = _A_setup()

    def _B_setup():
        B, S, D, F = 1, 2048, 512, 1792
        return {
            "x": _w((lambda *s: torch.randn(*s, dtype=torch.bfloat16) * 0.05)(B, S, D)),
            "w1": _w((lambda *s: torch.randn(*s, dtype=torch.bfloat16) * 0.8)(D, F) * (D ** -0.5)),
            "b1": _w((lambda *s: torch.randn(*s, dtype=torch.bfloat16) * 12.8)(F) * 0.01),
            "w2": _w((lambda *s: torch.randn(*s, dtype=torch.bfloat16) * 0.8)(F, D) * (F ** -0.5)),
            "b2": _w((lambda *s: torch.randn(*s, dtype=torch.bfloat16) * 12.8)(D) * 0.01),
        }
    _B_in = _B_setup()

    return {
        "A_x": _A_in["x"],
        "A_Lambda_re": _A_in["Lambda_re"],
        "A_Lambda_im": _A_in["Lambda_im"],
        "A_B_re": _A_in["B_re"],
        "A_B_im": _A_in["B_im"],
        "A_C_re": _A_in["C_re"],
        "A_C_im": _A_in["C_im"],
        "A_log_dt": _A_in["log_dt"],
        "A_Dskip": _A_in["Dskip"],
        "B_x": _B_in["x"],
        "B_w1": _B_in["w1"],
        "B_b1": _B_in["b1"],
        "B_w2": _B_in["w2"],
        "B_b2": _B_in["b2"],
    }

def reference(A_x, A_Lambda_re, A_Lambda_im, A_B_re, A_B_im, A_C_re, A_C_im, A_log_dt, A_Dskip, B_x, B_w1, B_b1, B_w2, B_b2):
    def _A_ref(x, Lambda_re, Lambda_im, B_re, B_im, C_re, C_im, log_dt, Dskip):
        Bsz, L, H = x.shape
        Lam = Lambda_re + 1j * Lambda_im
        Bmat = B_re + 1j * B_im
        Cmat = C_re + 1j * C_im
        dt = torch.exp(log_dt)
        Lam_bar = torch.exp(dt * Lam)
        B_bar = ((Lam_bar - 1.0) / Lam)[:, None] * Bmat
        Bu = torch.einsum("bld,pd->blp", x + 0j, B_bar)
        h = torch.zeros_like(Bu[:, 0, :])
        hs = []
        for t in range(L):
            h = Lam_bar[None, :] * h + Bu[:, t, :]
            hs.append(h)
        hseq = torch.stack(hs, 1)
        y = 2.0 * torch.einsum("blp,dp->bld", hseq, Cmat).real + x * Dskip[None, None, :]
        return y

    def _B_ref(x, w1, b1, w2, b2):
        h = torch.einsum("bsd,df->bsf", x, w1) + b1
        h = _gelu(h)
        return torch.einsum("bsf,fd->bsd", h, w2) + b2

    x = A_x
    xn = _layernorm(x, axis=-1)
    return x + _A_ref(xn, A_Lambda_re, A_Lambda_im, A_B_re, A_B_im, A_C_re, A_C_im, A_log_dt, A_Dskip) + _B_ref(xn, B_w1, B_b1, B_w2, B_b2)
```

```python
import re

REG_RE = re.compile(r'(?<![\w.])([vas])(?:\[(\d+):(\d+)\]|(\d+))(?![\w])')
SPECIAL = ('vcc', 'exec', 'm0', 'scc')


def regs_of(tok):
    tok = tok.strip()
    neg = tok.lstrip('-')
    if neg.startswith('abs(') or neg.startswith('|'):
        neg = neg.replace('abs(', '').replace(')', '').replace('|', '')
    out = []
    m = REG_RE.fullmatch(neg)
    if m:
        k = m.group(1)
        if m.group(4) is not None:
            out.append((k, int(m.group(4))))
        else:
            for i in range(int(m.group(2)), int(m.group(3)) + 1):
                out.append((k, i))
        return out
    if neg in ('vcc', 'vcc_lo', 'vcc_hi'):
        return [('x', 'vcc')]
    if neg in ('exec', 'exec_lo', 'exec_hi'):
        return [('x', 'exec')]
    if neg == 'm0':
        return [('x', 'm0')]
    return []


TRANS = ('v_exp_f32', 'v_log_f32', 'v_rcp_f32', 'v_rsq_f32', 'v_sqrt_f32', 'v_sin_f32', 'v_cos_f32',
         'v_rcp_iflag_f32')
MFMA_PASSES = {'v_mfma_f32_32x32x16_bf16': 8, 'v_mfma_f32_16x16x32_bf16': 4}
RMW_DST = ('v_fmac_f32', 'v_dot2c_f32_bf16', 'v_pk_fmac_f16', 'v_writelane_b32', 'v_mac_f32')


class Ins:
    __slots__ = ('text', 'op', 'kind', 'wr', 'rd', 'srcc', 'srcab', 'dpp', 'lds_dma', 'comment', 'nowaitregs')

    def __init__(self, text):
        self.text = text
        body = text.split(';')[0].strip()
        parts = body.split(None, 1)
        op = parts[0]
        self.op = op
        rest = parts[1] if len(parts) > 1 else ''
        ops = []
        cur = ''
        depth = 0
        for ch in rest:
            if ch in '[(':
                depth += 1
            if ch in '])':
                depth -= 1
            if ch == ',' and depth == 0:
                ops.append(cur.strip())
                cur = ''
            else:
                cur += ch
        if cur.strip():
            ops.append(cur.strip())
        mods = ''
        if ops:
            sp = ops[-1].split(None, 1)
            if len(sp) > 1:
                ops[-1] = sp[0]
                mods = sp[1]
        self.wr = []
        self.rd = []
        self.srcc = []
        self.srcab = []
        self.dpp = ('row_' in mods or 'quad_perm' in mods or 'wave_' in mods or 'row_' in rest)
        self.lds_dma = False
        base = op.replace('_e32', '').replace('_e64', '').replace('_dpp', '').replace('_sdwa', '')
        R = regs_of
        if op.startswith('v_mfma'):
            self.kind = 'mfma'
            self.wr = R(ops[0])
            self.srcab = R(ops[1]) + R(ops[2])
            self.srcc = R(ops[3])
            self.rd = self.srcab + self.srcc
        elif op.startswith('v_cmp'):
            self.kind = 'valu'
            self.wr = R(ops[0])
            if op.startswith('v_cmpx'):
                self.wr += [('x', 'exec')]
            for o in ops[1:]:
                self.rd += R(o)
        elif base in ('v_readfirstlane_b32', 'v_readlane_b32'):
            self.kind = 'valu'
            self.wr = R(ops[0])
            for o in ops[1:]:
                self.rd += R(o)
        elif base.startswith('v_permlane') and 'swap' in base:
            self.kind = 'valu'
            self.wr = R(ops[0]) + R(ops[1])
            self.rd = R(ops[0]) + R(ops[1])
        elif base in ('v_add_co_u32', 'v_sub_co_u32', 'v_addc_co_u32', 'v_subb_co_u32', 'v_subrev_co_u32',
                      'v_mad_u64_u32', 'v_div_scale_f32'):
            self.kind = 'valu'
            self.wr = R(ops[0]) + R(ops[1])
            for o in ops[2:]:
                self.rd += R(o)
        elif op.startswith('v_'):
            self.kind = 'trans' if base in TRANS else 'valu'
            self.wr = R(ops[0])
            for o in ops[1:]:
                self.rd += R(o)
            if base in RMW_DST or base.startswith('v_fmac') or base.startswith('v_dot2c'):
                self.rd += R(ops[0])
            if self.dpp or 'op_sel' in mods and False:
                self.rd += R(ops[0])
        elif op.startswith('ds_'):
            self.kind = 'ds'
            if op.startswith('ds_read') or op.startswith('ds_bpermute') or op.startswith('ds_permute') or op.startswith('ds_swizzle'):
                self.wr = R(ops[0])
                for o in ops[1:]:
                    self.rd += R(o)
            else:
                for o in ops:
                    self.rd += R(o)
        elif op.startswith('buffer_') or op.startswith('global_'):
            self.kind = 'vmem'
            lds = bool(re.search(r'\blds\b', mods)) or '_lds_' in op
            self.lds_dma = lds
            if 'load' in op and not lds:
                self.wr = R(ops[0])
                if '_d16' in op:
                    self.rd += R(ops[0])
                for o in ops[1:]:
                    self.rd += R(o)
            elif 'atomic' in op and re.search(r'\bsc0\b', mods):
                if op.startswith('buffer_'):
                    self.wr = R(ops[0])
                    for o in ops:
                        self.rd += R(o)
                else:
                    self.wr = R(ops[0])
                    for o in ops[1:]:
                        self.rd += R(o)
            else:
                for o in ops:
                    self.rd += R(o)
            if lds:
                self.rd.append(('x', 'm0'))
        elif op.startswith('s_load') or op.startswith('s_buffer_load') or op in ('s_memtime', 's_memrealtime'):
            self.kind = 'smem'
            self.wr = R(ops[0])
            for o in ops[1:]:
                self.rd += R(o)
        elif op.startswith('s_'):
            self.kind = 'salu'
            nodst = ('s_cmp', 's_waitcnt', 's_barrier', 's_branch', 's_cbranch', 's_nop', 's_endpgm', 's_sleep',
                     's_setprio', 's_bitcmp', 's_setreg', 's_sethalt', 's_sendmsg')
            if any(op.startswith(p) for p in nodst):
                for o in ops:
                    self.rd += R(o)
            else:
                self.wr = R(ops[0])
                for o in ops[1:]:
                    self.rd += R(o)
                if 'saveexec' in op:
                    self.wr.append(('x', 'exec'))
                    self.rd.append(('x', 'exec'))
                if op.startswith('s_addk') or op.startswith('s_mulk'):
                    self.rd += R(ops[0])
        else:
            raise ValueError('unknown instruction ' + text)


def is_valu(i):
    return i.kind in ('valu', 'trans')


class Prog:
    def __init__(self):
        self.items = []

    def I(self, text):
        for t in text.strip().split('\n'):
            t = t.strip()
            if not t:
                continue
            if t.startswith(';'):
                self.items.append(t)
            else:
                self.items.append(Ins(t))

    __call__ = I

    def label(self, name):
        self.items.append(name + ':')

    def raw(self, text):
        self.items.append(text)

    def extend(self, other):
        self.items += other.items


def need_states(prev, cur):
    n = 0
    pw = set(prev.wr)
    cr = set(cur.rd)
    cw = set(cur.wr)
    if prev.kind == 'mfma':
        p = MFMA_PASSES[prev.op]
        if cur.kind == 'mfma':
            if pw & set(cur.srcc):
                if set(prev.wr) == set(cur.srcc) and prev.op == cur.op:
                    n = max(n, 0)
                else:
                    n = max(n, p + 2)
            if pw & set(cur.srcab):
                n = max(n, p + 4)
            if (pw & cw) and not (pw & set(cur.srcc)):
                n = max(n, p + 2)
        else:
            if cur.kind in ('valu', 'trans', 'vmem', 'ds'):
                if pw & (cr | cw):
                    n = max(n, p + 4)
                if is_valu(cur) and (set(prev.srcc) & cw):
                    n = max(n, p - 1)
    elif is_valu(prev):
        vw = {r for r in pw if r[0] in 'va'}
        sw = {r for r in pw if r[0] == 's' or r == ('x', 'vcc')}
        if cur.kind == 'mfma':
            if vw & cr:
                n = max(n, 2)
            if ('x', 'exec') in pw:
                n = max(n, 4)
        if prev.kind == 'trans' and is_valu(cur) and (vw & (cr | cw)):
            n = max(n, 1)
        if prev.kind == 'trans' and cur.kind in ('mfma', 'vmem', 'ds') and (vw & cr):
            n = max(n, 2)
        if is_valu(cur):
            if sw & cr:
                n = max(n, 2)
                if cur.op.startswith('v_readlane') or cur.op.startswith('v_writelane'):
                    n = max(n, 4)
            if cur.dpp and (vw & cr):
                n = max(n, 2)
            if cur.op.startswith('v_permlane') and (vw & cr):
                n = max(n, 2)
            if (cur.op.startswith('v_readfirstlane') or cur.op.startswith('v_readlane')) and (vw & cr):
                n = max(n, 1)
            if ('x', 'exec') in pw:
                n = max(n, 5 if cur.dpp else (4 if cur.op.startswith('v_readlane') or cur.op.startswith('v_readfirstlane') or cur.op.startswith('v_permlane') else 2))
        if cur.kind == 'vmem' and (sw & cr):
            n = max(n, 5)
        if cur.kind in ('salu', 'smem') and (sw & cr):
            n = max(n, 3)
        if cur.kind in ('salu',) and cur.op.startswith('s_cbranch_vcc') and ('x', 'vcc') in pw:
            n = max(n, 5)
        if cur.kind in ('salu',) and cur.op.startswith('s_cbranch_exec') and ('x', 'exec') in pw:
            n = max(n, 5)
    elif prev.kind == 'vmem':
        if ('store' in prev.op or 'atomic' in prev.op) and ('x3' in prev.op or 'x4' in prev.op or 'cmpswap' in prev.op):
            if cw & {r for r in prev.rd if r[0] in 'va'}:
                n = max(n, 2)
    elif prev.kind == 'ds':
        if prev.op.startswith('ds_write') and ('b128' in prev.op or 'b96' in prev.op or 'b64' in prev.op):
            if is_valu(cur) and (cw & {r for r in prev.rd if r[0] in 'va'}):
                n = max(n, 2)
    elif prev.kind == 'salu':
        if ('x', 'm0') in pw and (cur.lds_dma or cur.op.startswith('s_sendmsg')):
            n = max(n, 1)
    return n


MAXWIN = 20


def finalize(prog, check_only=False):
    out = []
    hist = []
    states = 0
    vm_issued = 0
    vm_done = 0
    lg_issued = 0
    lg_done = 0
    smem_pending = False
    pend_vm = {}
    pend_lg = {}
    pend_sm = set()
    carry = False

    def emit(txt):
        out.append('    ' + txt)

    def wait(vm=None, lg=None):
        nonlocal vm_done, lg_done, smem_pending, states
        parts = []
        if vm is not None:
            n = min(vm, 63)
            parts.append('vmcnt(%d)' % n)
            vm_done = max(vm_done, vm_issued - n)
        if lg is not None:
            n = min(lg, 15)
            parts.append('lgkmcnt(%d)' % n)
            if n == 0:
                smem_pending = False
                pend_sm.clear()
                lg_done = lg_issued
            elif not smem_pending:
                lg_done = max(lg_done, lg_issued - n)
        emit('s_waitcnt ' + ' '.join(parts))
        states += 1
        purge()

    def purge():
        for r in [r for r, i in pend_vm.items() if i < vm_done]:
            del pend_vm[r]
        for r in [r for r, i in pend_lg.items() if i < lg_done]:
            del pend_lg[r]

    def flush_all():
        vm = 0 if pend_vm else None
        lg = 0 if (pend_lg or pend_sm) else None
        if pend_vm:
            vm = vm_issued - (max(pend_vm.values()) + 1)
        if vm is not None or lg is not None:
            wait(vm, lg)

    for it in prog.items:
        if isinstance(it, str):
            s = it.strip()
            if s == ';@carry':
                carry = True
                continue
            if s.endswith(':') and not s.startswith(';'):
                if not carry:
                    flush_all()
                carry = False
                out.append(s)
                hist = []
                continue
            out.append('    ' + s)
            continue
        ins = it
        if ins.op == 's_waitcnt':
            m = re.search(r'vmcnt\((\d+)\)', ins.text)
            if m:
                vm_done = max(vm_done, vm_issued - int(m.group(1)))
            m = re.search(r'lgkmcnt\((\d+)\)', ins.text)
            if m:
                n = int(m.group(1))
                if n == 0:
                    smem_pending = False
                    pend_sm.clear()
                    lg_done = lg_issued
                elif not smem_pending:
                    lg_done = max(lg_done, lg_issued - n)
            purge()
            emit(ins.text)
            states += 1
            continue
        if ins.op.startswith('s_cbranch') or ins.op == 's_branch' or ins.op == 's_endpgm':
            if ins.op != 's_endpgm' and not carry:
                flush_all()
            carry = False
        touched = set(ins.rd) | set(ins.wr)
        vm = None
        lg = None
        for r in touched:
            if r in pend_vm:
                if ins.kind == 'vmem' and r in ins.wr and r not in ins.rd:
                    continue
                need = vm_issued - (pend_vm[r] + 1)
                vm = need if vm is None else min(vm, need)
            if r in pend_lg:
                if ins.kind == 'ds' and r in ins.wr and r not in ins.rd:
                    continue
                need = lg_issued - (pend_lg[r] + 1)
                if smem_pending:
                    need = 0
                lg = need if lg is None else min(lg, need)
            if r in pend_sm:
                lg = 0
        if vm is not None or lg is not None:
            wait(vm, lg)
        req = 0
        for (p, at) in hist:
            dist = states - at - 1
            n = need_states(p, ins)
            if n - dist > req:
                req = n - dist
        while req > 0:
            k = min(req, 16)
            emit('s_nop %d' % (k - 1))
            states += k
            req -= k
        emit(ins.text)
        hist.append((ins, states))
        if ins.op == 's_nop':
            states += int(ins.text.split()[1]) + 1
        else:
            states += 1
        hist = [(p, at) for (p, at) in hist if states - at <= MAXWIN]
        if ins.kind == 'vmem':
            for r in ins.wr:
                pend_vm[r] = vm_issued
            vm_issued += 1
        elif ins.kind == 'ds':
            for r in ins.wr:
                pend_lg[r] = lg_issued
            lg_issued += 1
        elif ins.kind == 'smem':
            for r in ins.wr:
                pend_sm.add(r)
            smem_pending = True
            lg_issued += 1
    return '\n'.join(out) + '\n'


def interleave(main, side, ratio_slots):
    out = []
    j = 0
    for i, m in enumerate(main):
        out.append(m)
        k = ratio_slots(i, m)
        for _ in range(k):
            if j < len(side):
                out.append(side[j])
                j += 1
    out += side[j:]
    return out
```

```python
from asmlib import *
from layout import *
from gen_k2 import KA, srd, add64, kernel_header, kernel_desc


def wave_sum(p, v, tmp, s0):
    for mod in ("quad_perm:[1,0,3,2]", "quad_perm:[2,3,0,1]", "row_half_mirror", "row_mirror"):
        p(f"v_add_f32_dpp v{v}, v{v}, v{v} {mod} row_mask:0xf bank_mask:0xf")
    for i in range(4):
        p(f"v_readlane_b32 s{s0+i}, v{v}, {16*i}")
    p(f"v_mov_b32 v{v}, s{s0}")
    for i in range(1, 4):
        p(f"v_add_f32 v{v}, s{s0+i}, v{v}")


def round_bf16(p, v):
    p(f"v_cvt_pk_bf16_f32 v{v}, v{v}, v{v}")
    p(f"v_and_b32 v{v}, 0xffff0000, v{v}")


def unpack8(p, src, dst):
    for i in range(4):
        p(f"v_lshlrev_b32 v{dst+2*i}, 16, v{src+i}")
        p(f"v_and_b32 v{dst+2*i+1}, 0xffff0000, v{src+i}")


def gen_k0(name="k0_kernel"):
    p = Prog()
    end = name + "_end"
    p("s_cmp_ge_u32 s2, 256")
    p(f"s_cbranch_scc1 {end}")
    p(f"s_load_dwordx2 s[4:5], s[0:1], {KA['x']}")
    p(f"s_load_dwordx4 s[8:11], s[0:1], {KA['bre']}")
    p(f"s_load_dwordx4 s[12:15], s[0:1], {KA['cre']}")
    p(f"s_load_dwordx2 s[16:17], s[0:1], {KA['w1']}")
    p(f"s_load_dwordx2 s[18:19], s[0:1], {KA['w2']}")
    p(f"s_load_dwordx2 s[20:21], s[0:1], {KA['ws']}")
    p("v_lshrrev_b32 v1, 6, v0")
    p("v_and_b32 v2, 63, v0")
    p("v_readfirstlane_b32 s22, v1")
    p("s_waitcnt lgkmcnt(0)")
    srd(p, 24, 4, 5, 2048 * 1024)
    srd(p, 28, 8, 9, 512 * 1024)
    srd(p, 32, 10, 11, 512 * 1024)
    srd(p, 36, 12, 13, 512 * 1024)
    srd(p, 40, 14, 15, 512 * 1024)
    srd(p, 44, 16, 17, 512 * 3584)
    srd(p, 48, 18, 19, 1792 * 1024)
    srd(p, 52, 20, 21, WS_END)
    p("v_lshlrev_b32 v3, 4, v2")
    p("v_mov_b32 v4, 0")
    for r in range(2):
        p("s_lshl_b32 s56, s2, 3")
        p("s_lshl_b32 s57, s22, 1")
        p("s_add_u32 s56, s56, s57")
        p(f"s_add_u32 s56, s56, {r}")
        p("s_lshl_b32 s57, s56, 10")
        p("buffer_load_dwordx4 v[8:11], v3, s[24:27], s57 offen")
        unpack8(p, 8, 12)
        p("v_add_f32 v20, v12, v13")
        for i in range(2, 8):
            p(f"v_add_f32 v20, v20, v{12+i}")
        wave_sum(p, 20, 21, 60)
        p("v_mul_f32 v20, 0x3b000000, v20")
        p("v_mov_b32 v21, 0")
        for i in range(8):
            p(f"v_sub_f32 v{12+i}, v{12+i}, v20")
            p(f"v_fmac_f32 v21, v{12+i}, v{12+i}")
        wave_sum(p, 21, 22, 60)
        p("v_mul_f32 v21, 0x3b000000, v21")
        round_bf16(p, 20)
        round_bf16(p, 21)
        p("v_add_f32 v21, 0x3727c5ac, v21")
        round_bf16(p, 21)
        p("v_sqrt_f32 v21, v21")
        round_bf16(p, 21)
        p("v_rcp_f32 v21, v21")
        p("s_lshl_b32 s57, s56, 3")
        p(f"s_add_u32 s57, s57, {WS_STATS}")
        p("v_cmp_eq_u32 vcc, 0, v2")
        p("s_and_saveexec_b64 s[58:59], vcc")
        p("buffer_store_dwordx2 v[20:21], v4, s[52:55], s57 offen")
        p("s_mov_b64 exec, s[58:59]")
    p("s_lshl_b32 s56, s2, 2")
    p("s_add_u32 s56, s56, s22")
    p("s_and_b32 s57, s56, 511")
    p("s_lshl_b32 s57, s57, 10")
    p("s_cmp_ge_u32 s56, 512")
    p("s_cselect_b32 s64, s32, s28")
    p("s_cselect_b32 s65, s33, s29")
    p("s_mov_b32 s66, s30")
    p("s_mov_b32 s67, 0x00020000")
    p("buffer_load_dwordx4 v[8:11], v3, s[64:67], s57 offen")
    unpack8(p, 8, 12)
    p("v_add_f32 v20, v12, v13")
    for i in range(2, 8):
        p(f"v_add_f32 v20, v20, v{12+i}")
    wave_sum(p, 20, 21, 60)
    p("s_lshl_b32 s57, s56, 2")
    p(f"s_add_u32 s57, s57, {WS_COLSUM}")
    p("v_cmp_eq_u32 vcc, 0, v2")
    p("s_and_saveexec_b64 s[58:59], vcc")
    p("buffer_store_dword v20, v4, s[52:55], s57 offen")
    p("s_mov_b64 exec, s[58:59]")
    skipc = name + "_skipc"
    p("s_cmp_ge_u32 s2, 56")
    p(f"s_cbranch_scc1 {skipc}")
    p("v_and_b32 v5, 3, v2")
    p("v_lshrrev_b32 v6, 2, v2")
    p("s_lshl_b32 s56, s22, 4")
    p("v_add_u32 v6, s56, v6")
    p("s_movk_i32 s57, 3584")
    p("v_mul_lo_u32 v6, v6, s57")
    p("v_lshl_add_u32 v6, v5, 4, v6")
    p("s_lshl_b32 s56, s2, 6")
    for i in range(8):
        p(f"v_mov_b32 v{40+i}, 0")
    for ps in range(8):
        p(f"buffer_load_dwordx4 v[{48+4*ps}:{51+4*ps}], v6, s[44:47], s56 offen")
        p(f"s_add_u32 s56, s56, {64*3584}")
    for ps in range(8):
        unpack8(p, 48 + 4 * ps, 12)
        for i in range(8):
            p(f"v_add_f32 v{40+i}, v{40+i}, v{12+i}")
    p("v_lshlrev_b32 v7, 5, v0")
    p("ds_write_b128 v7, v[40:43]")
    p("ds_write_b128 v7, v[44:47] offset:16")
    p("s_waitcnt lgkmcnt(0)")
    p("s_barrier")
    p("v_cmp_gt_u32 vcc, 32, v0")
    p("s_and_saveexec_b64 s[58:59], vcc")
    p(f"s_cbranch_execz {skipc}_r")
    p("v_lshrrev_b32 v5, 3, v0")
    p("v_and_b32 v6, 7, v0")
    p("v_lshlrev_b32 v5, 5, v5")
    p("v_lshl_add_u32 v5, v6, 2, v5")
    p("v_mov_b32 v20, 0")
    for rl in range(64):
        p(f"ds_read_b32 v{48+(rl%16)}, v5 offset:{rl*128}")
        if rl % 16 == 15:
            for i in range(16):
                p(f"v_add_f32 v20, v20, v{48+i}")
    p("s_lshl_b32 s57, s2, 7")
    p(f"s_add_u32 s57, s57, {WS_COLSUM + 4096}")
    p("v_lshlrev_b32 v5, 2, v0")
    p("buffer_store_dword v20, v5, s[52:55], s57 offen")
    p.label(skipc + "_r")
    p("s_mov_b64 exec, s[58:59]")
    p.label(skipc)
    p("v_and_b32 v5, 31, v2")
    p("v_lshrrev_b32 v6, 5, v2")
    p("v_lshlrev_b32 v7, 12, v6")
    p("v_lshl_add_u32 v7, v5, 1, v7")
    p("v_lshlrev_b32 v8, 10, v5")
    p("v_lshl_add_u32 v8, v6, 3, v8")
    p("s_mov_b32 s70, 0x05040100")
    p("s_mov_b32 s71, 0x07060302")
    for jj in range(3):
        nxt = f"{name}_wc{jj}_done"
        ssm = f"{name}_wc{jj}_ssm"
        st = f"{name}_wc{jj}_st"
        p(f"s_add_u32 s56, s22, {4*jj}")
        p("s_cmp_ge_u32 s56, 11")
        p(f"s_cbranch_scc1 {nxt}")
        p("s_mul_i32 s57, s2, 11")
        p("s_add_u32 s56, s56, s57")
        p("s_mov_b32 s57, 12201612")
        p("s_mul_hi_u32 s57, s56, s57")
        p("s_mul_i32 s58, s57, 352")
        p("s_sub_u32 s58, s56, s58")
        p("s_lshr_b32 s59, s58, 1")
        p("s_and_b32 s58, s58, 1")
        p("s_lshl_b32 s60, s57, 6")
        p("s_lshl_b32 s61, s58, 5")
        p("s_add_u32 s60, s60, s61")
        p("s_cmp_lt_u32 s59, 64")
        p(f"s_cbranch_scc1 {ssm}")
        p("s_sub_u32 s61, s59, 64")
        p("s_lshl_b32 s61, s61, 14")
        p("s_lshl_b32 s62, s60, 1")
        p("s_add_u32 s61, s61, s62")
        for pp in range(8):
            off = (8 * (pp >> 2) + (pp & 3)) * 1024
            p(f"s_add_u32 s62, s61, {off}")
            p(f"buffer_load_ushort v{24+pp}, v7, s[48:51], s62 offen")
        for q in range(4):
            p(f"v_lshl_or_b32 v{12+q}, v{25+2*q}, 16, v{24+2*q}")
        p(f"s_branch {st}")
        p.label(ssm)
        p("s_lshl_b32 s61, s60, 10")
        p("s_lshl_b32 s62, s59, 4")
        p("s_add_u32 s61, s61, s62")
        p("buffer_load_dwordx2 v[16:17], v8, s[36:39], s61 offen")
        p("buffer_load_dwordx2 v[18:19], v8, s[40:43], s61 offen")
        p("v_perm_b32 v12, v18, v16, s70")
        p("v_perm_b32 v13, v18, v16, s71")
        p("v_perm_b32 v14, v19, v17, s70")
        p("v_perm_b32 v15, v19, v17, s71")
        p.label(st)
        p("s_lshl_b32 s61, s56, 10")
        p(f"s_add_u32 s61, s61, {WS_WC}")
        p("buffer_store_dwordx4 v[12:15], v3, s[52:55], s61 offen")
        p.label(nxt)
    p.label(end)
    p("s_endpgm")
    code = kernel_header(name) + finalize(p)
    desc = kernel_desc(name, 96, 80, 96)
    return code, desc, 8192
```

```python
from asmlib import *
from layout import *
from gen_k2 import KA, srd, add64, kernel_header, kernel_desc

SLOT = 24576
U0 = 98304
MISC = 65536
M_E = MISC
M_TAB = MISC + 2048
M_TB = MISC + 4096
LOG2E = 1.4426950408889634


def f32(x):
    import struct
    return "0x%08x" % struct.unpack("<I", struct.pack("<f", x))[0]


def gen_k1(name="k1_kernel", stamps=False):
    p = Prog()
    end = name + "_end"
    p("s_cmp_ge_u32 s2, 256")
    p(f"s_cbranch_scc1 {end}")
    if stamps:
        p("s_memtime s[80:81]")
    p(f"s_load_dwordx4 s[4:7], s[0:1], {KA['x']}")
    p(f"s_load_dwordx4 s[8:11], s[0:1], {KA['lim']}")
    p(f"s_load_dwordx2 s[12:13], s[0:1], {KA['bim']}")
    p(f"s_load_dwordx2 s[14:15], s[0:1], {KA['ldt']}")
    p(f"s_load_dwordx4 s[16:19], s[0:1], {KA['w1']}")
    p(f"s_load_dwordx4 s[20:23], s[0:1], {KA['dbg']}")
    p("v_lshrrev_b32 v1, 6, v0")
    p("s_and_b32 s25, s2, 7")
    p("v_readfirstlane_b32 s24, v1")
    p("v_and_b32 v1, 63, v0")
    p("s_lshr_b32 s26, s2, 3")
    p("s_lshr_b32 s27, s26, 4")
    p("s_lshl_b32 s25, s25, 1")
    p("s_add_u32 s27, s27, s25")
    p("s_and_b32 s28, s26, 15")
    p("s_lshr_b32 s29, s28, 2")
    p("s_mul_i32 s29, s29, 7")
    p("s_and_b32 s30, s28, 3")
    p("s_lshl_b32 s31, s30, 1")
    p("s_add_u32 s29, s29, s31")
    p("s_cmp_ge_u32 s24, 4")
    p(f"s_cbranch_scc1 {name}_loader")

    p("s_waitcnt lgkmcnt(0)")
    srd(p, 32, 22, 23, WS_END)
    srd(p, 36, 20, 21, 256)
    srd(p, 40, 6, 7, 1024)
    srd(p, 44, 8, 9, 1024)
    srd(p, 48, 14, 15, 1024)
    p("v_and_b32 v2, 31, v1")
    p("v_lshrrev_b32 v3, 5, v1")
    p("v_bfe_u32 v12, v2, 1, 3")
    p("v_xor_b32 v12, v12, v3")
    p("v_lshlrev_b32 v12, 4, v12")
    p("v_lshl_add_u32 v12, v2, 7, v12")
    p("s_lshl_b32 s52, s24, 12")
    for u in range(4):
        p(f"v_xor_b32 v{8+u}, {32*u}, v12")
        p(f"v_add_u32 v{4+u}, s52, v{8+u}")
        p(f"v_add_u32 v{8+u}, 16384, v{8+u}")
    p("s_lshl_b32 s53, s28, 6")
    p("v_lshlrev_b32 v13, 1, v2")
    p("buffer_load_ushort v104, v13, s[40:43], s53 offen")
    p("buffer_load_ushort v105, v13, s[44:47], s53 offen")
    p("buffer_load_ushort v106, v13, s[48:51], s53 offen")
    p("s_lshl_b32 s53, s28, 7")
    p(f"s_add_u32 s53, s53, {WS_COLSUM}")
    p("v_lshlrev_b32 v13, 2, v2")
    p("buffer_load_dword v107, v13, s[32:35], s53 offen")
    p("buffer_load_dword v108, v13, s[32:35], s53 offen offset:2048")
    p("v_bfe_u32 v13, v2, 2, 1")
    p("v_lshlrev_b32 v13, 4, v13")
    p("v_lshrrev_b32 v14, 3, v2")
    p("v_lshl_add_u32 v13, v14, 2, v13")
    p("v_and_b32 v14, 3, v2")
    p("v_add_u32 v13, v13, v14")
    p("v_lshlrev_b32 v13, 3, v13")
    p("s_lshl_b32 s53, s27, 10")
    p("s_lshl_b32 s54, s24, 8")
    p("s_add_u32 s53, s53, s54")
    p(f"s_add_u32 s53, s53, {WS_STATS}")
    p("buffer_load_dwordx2 v[110:111], v13, s[32:35], s53 offen")
    p("v_lshlrev_b32 v104, 16, v104")
    p("v_lshlrev_b32 v105, 16, v105")
    p("v_lshlrev_b32 v106, 16, v106")
    p(f"v_mul_f32 v106, {f32(LOG2E)}, v106")
    p("v_exp_f32 v106, v106")
    p("v_cvt_pk_bf16_f32 v106, v106, v106")
    p("v_and_b32 v106, 0xffff0000, v106")
    p("v_mul_f32 v112, v106, v104")
    p("v_mul_f32 v113, v106, v105")
    p(f"v_mul_f32 v112, {f32(LOG2E)}, v112")
    p(f"v_mul_f32 v113, {f32(0.15915494309189535)}, v113")

    def cpow(n_txt, dre, dim, t0, t1):
        p(f"v_mul_f32 v{t0}, {n_txt}, v112")
        p(f"v_mul_f32 v{t1}, {n_txt}, v113")
        p(f"v_exp_f32 v{t0}, v{t0}")
        p(f"v_fract_f32 v{t1}, v{t1}")
        p(f"v_cos_f32 v{dre}, v{t1}")
        p(f"v_sin_f32 v{dim}, v{t1}")
        p(f"v_mul_f32 v{dre}, v{dre}, v{t0}")
        p(f"v_mul_f32 v{dim}, v{dim}, v{t0}")
    A_RE, A_IM, A16_RE, A16_IM, A128_RE, A128_IM, AS_RE, AS_IM, C_RE, C_IM = 114, 115, 116, 117, 118, 119, 120, 121, 122, 123
    cpow("1.0", A_RE, A_IM, 124, 125)
    cpow(f32(16.0), A16_RE, A16_IM, 124, 125)
    cpow(f32(128.0), A128_RE, A128_IM, 124, 125)
    p("s_lshl_b32 s54, s24, 1")
    p("v_add_u32 v126, s54, v3")
    p("v_cvt_f32_u32 v127, v126")
    p(f"v_mul_f32 v127, {f32(16.0)}, v127")
    cpow("v127", AS_RE, AS_IM, 124, 125)
    p(f"v_add_f32 v124, -1.0, v{A_RE}")
    p("v_mul_f32 v125, v104, v104")
    p("v_fmac_f32 v125, v105, v105")
    p("v_rcp_f32 v125, v125")
    p("v_add_f32 v125, v125, v125")
    p(f"v_mul_f32 v{C_RE}, v124, v104")
    p(f"v_fmac_f32 v{C_RE}, v{A_IM}, v105")
    p(f"v_mul_f32 v{C_IM}, v{A_IM}, v104")
    p(f"v_fma_f32 v{C_IM}, -v124, v105, v{C_IM}")
    p(f"v_mul_f32 v{C_RE}, v{C_RE}, v125")
    p(f"v_mul_f32 v{C_IM}, v{C_IM}, v125")
    for s in range(8):
        p("s_barrier")
        for u in range(4):
            p(f"ds_read_b128 a[{16*s+4*u}:{16*s+4*u+3}], v{4+u}")
            p(f"ds_read_b128 v[{48+8*u}:{51+8*u}], v{8+u}")
            p(f"ds_read_b128 v[{52+8*u}:{55+8*u}], v{8+u} offset:4096")
        for u in range(4):
            c0 = "0" if (s == 0 and u == 0) else "v[16:31]"
            c1 = "0" if (s == 0 and u == 0) else "v[32:47]"
            p(f"v_mfma_f32_32x32x16_bf16 v[16:31], a[{16*s+4*u}:{16*s+4*u+3}], v[{48+8*u}:{51+8*u}], {c0}")
            p(f"v_mfma_f32_32x32x16_bf16 v[32:47], a[{16*s+4*u}:{16*s+4*u+3}], v[{52+8*u}:{55+8*u}], {c1}")
        if s < 7:
            d = SLOT if (s % 4) != 3 else -3 * SLOT
            for u in range(8):
                if d > 0:
                    p(f"v_add_u32 v{4+u}, {d}, v{4+u}")
                else:
                    p(f"v_subrev_u32 v{4+u}, {-d}, v{4+u}")
    p("s_waitcnt lgkmcnt(0)")
    if stamps:
        p("s_memtime s[82:83]")
    p("s_barrier")
    p("v_lshlrev_b32 v13, 7, v3")
    for i in range(8):
        p(f"buffer_load_dwordx4 v[{48+4*i}:{51+4*i}], v13, s[32:35], s53 offen offset:{16*i}")
    for r in range(16):
        mm, rs = 48 + 2 * r, 49 + 2 * r
        p(f"v_fma_f32 v{16+r}, -v{mm}, v107, v{16+r}")
        p(f"v_fma_f32 v{32+r}, -v{mm}, v108, v{32+r}")
        p(f"v_mul_f32 v{16+r}, v{16+r}, v{rs}")
        p(f"v_mul_f32 v{32+r}, v{32+r}, v{rs}")
    p("v_mov_b32 v80, v16")
    p("v_mov_b32 v81, v32")
    for r in range(1, 16):
        p(f"v_fma_f32 v82, v{A_RE}, v80, v{16+r}")
        p(f"v_fma_f32 v83, v{A_RE}, v81, v{32+r}")
        p(f"v_fma_f32 v82, -v{A_IM}, v81, v82")
        p(f"v_fma_f32 v81, v{A_IM}, v80, v83")
        p("v_mov_b32 v80, v82")
    p("v_lshlrev_b32 v13, 8, v126")
    p("v_lshl_add_u32 v13, v2, 3, v13")
    p(f"ds_write_b64 v13, v[80:81] offset:{M_E}" if M_E < 65536 else "")
    if M_E >= 65536:
        p(f"v_add_u32 v13, {M_E}, v13")
        p("ds_write_b64 v13, v[80:81]")
    p("s_waitcnt lgkmcnt(0)")
    p("s_barrier")
    p("v_lshlrev_b32 v13, 3, v2")
    p(f"v_add_u32 v13, {M_E}, v13")
    for s in range(8):
        p(f"ds_read_b64 v[{48+2*s}:{49+2*s}], v13 offset:{256*s}")
    p("v_mov_b32 v80, 0")
    p("v_mov_b32 v81, 0")
    p("v_mov_b32 v84, 0")
    p("v_mov_b32 v85, 0")
    for s in range(8):
        if s > 0:
            p(f"v_cmp_eq_u32 vcc, {s}, v126")
            p("v_cndmask_b32 v84, v84, v80, vcc")
            p("v_cndmask_b32 v85, v85, v81, vcc")
        p(f"v_fma_f32 v82, v{A16_RE}, v80, v{48+2*s}")
        p(f"v_fma_f32 v83, v{A16_RE}, v81, v{49+2*s}")
        p(f"v_fma_f32 v82, -v{A16_IM}, v81, v82")
        p(f"v_fma_f32 v81, v{A16_IM}, v80, v83")
        p("v_mov_b32 v80, v82")
    p("v_mov_b32 v104, v84")
    p("v_mov_b32 v105, v85")
    skip = name + "_nopub"
    p("s_cmp_lg_u32 s24, 0")
    p(f"s_cbranch_scc1 {skip}")
    p("s_lshl_b32 s54, s27, 4")
    p("s_add_u32 s54, s54, s28")
    p("s_lshl_b32 s54, s54, 8")
    p(f"s_add_u32 s54, s54, {WS_E}")
    p("v_lshlrev_b32 v13, 3, v2")
    p("v_cmp_gt_u32 vcc, 32, v1")
    p("s_and_saveexec_b64 s[56:57], vcc")
    p("buffer_store_dwordx2 v[80:81], v13, s[32:35], s54 offen sc0 sc1")
    p("s_waitcnt vmcnt(0)")
    p("s_mov_b64 exec, 1")
    p("s_lshl_b32 s55, 1, s27")
    p("v_mov_b32 v82, s55")
    p("s_lshl_b32 s55, s28, 2")
    p("v_mov_b32 v83, s55")
    p("buffer_atomic_or v82, v83, s[36:39], 0 offen sc1")
    p("s_mov_b64 exec, s[56:57]")
    p.label(skip)

    c0 = -2.0 * 0.7978845608028654 * LOG2E
    c1 = c0 * 0.044715
    p(f"s_mov_b32 s58, {f32(c0)}")
    p(f"s_mov_b32 s59, {f32(c1)}")
    p("v_mul_f32 v110, v110, v111")
    p("v_bfe_u32 v13, v1, 2, 2")
    p("v_lshl_add_u32 v14, v3, 3, v13")
    p("v_lshlrev_b32 v14, 7, v14")
    p("v_bfe_u32 v15, v1, 4, 1")
    p("v_lshlrev_b32 v15, 1, v15")
    p("v_bfe_u32 v12, v1, 1, 1")
    p("v_add_u32 v15, v15, v12")
    p("v_lshrrev_b32 v12, 1, v13")
    p("v_lshl_add_u32 v15, v12, 2, v15")
    p("v_lshl_add_u32 v14, v15, 4, v14")
    p("v_and_b32 v12, 1, v1")
    p("v_lshl_add_u32 v14, v12, 3, v14")
    p("v_xor_b32 v15, 64, v14")
    p(f"v_add_u32 v4, {U0}, v14")
    p(f"v_add_u32 v5, {U0}, v15")
    p("v_mov_b32 v6, v14")
    p("v_mov_b32 v7, v15")
    p("v_lshlrev_b32 v8, 4, v3")
    p(f"v_add_u32 v8, {M_TAB}, v8")
    p("v_lshlrev_b32 v9, 4, v1")
    p("s_lshl_b32 s60, s27, 1")
    p("s_lshr_b32 s61, s24, 1")
    p("s_add_u32 s60, s60, s61")
    p(f"s_mul_i32 s60, s60, {NSTEP*2048}")
    p("s_and_b32 s61, s24, 1")
    p("s_lshl_b32 s61, s61, 10")
    p("s_add_u32 s60, s60, s61")
    p(f"s_add_u32 s60, s60, {WS_H}")

    def ffn_tile(ti, areg):
        acc = 48
        NB = 6
        def rd(s):
            b = 80 + (s % NB) * 4
            p(f"ds_read_b64_tr_b16 v[{b}:{b+1}], v{areg} offset:{s*2048}")
            p(f"ds_read_b64_tr_b16 v[{b+2}:{b+3}], v{areg} offset:{s*2048+512}")
        for s in range(NB - 1):
            rd(s)
        for s in range(32):
            if s + NB - 1 < 32:
                rd(s + NB - 1)
            b = 80 + (s % NB) * 4
            c = "0" if s == 0 else f"v[{acc}:{acc+15}]"
            p(f"v_mfma_f32_32x32x16_bf16 v[{acc}:{acc+15}], v[{b}:{b+3}], a[{4*s}:{4*s+3}], {c}")
        for a in range(4):
            p(f"ds_read_b128 v[{64+4*a}:{67+4*a}], v8 offset:{(32*ti+8*a)*4}")
            p(f"ds_read_b128 v[{80+4*a}:{83+4*a}], v8 offset:{512+(32*ti+8*a)*4}")
        for j in range(16):
            x = acc + j
            p(f"v_fma_f32 v{80+j}, -v110, v{64+j}, v{80+j}")
            p(f"v_fma_f32 v{x}, v111, v{x}, v{80+j}")
        for j in range(16):
            x = acc + j
            t = 64 + j
            p(f"v_mul_f32 v{t}, v{x}, v{x}")
            p(f"v_fma_f32 v{t}, v{t}, s59, v{100}") if False else None
            p(f"v_mov_b32 v100, s58") if j == 0 else None
            p(f"v_fma_f32 v{t}, v{t}, s59, v100")
            p(f"v_mul_f32 v{t}, v{t}, v{x}")
            p(f"v_exp_f32 v{t}, v{t}")
            p(f"v_add_f32 v{t}, 1.0, v{t}")
            p(f"v_rcp_f32 v{t}, v{t}")
            p(f"v_mul_f32 v{t}, v{t}, v{x}")
        for u in range(2):
            for q in range(4):
                p(f"v_cvt_pk_bf16_f32 v{80+4*u+q}, v{64+8*u+2*q}, v{64+8*u+2*q+1}")
            p("s_lshl_b32 s61, s29, 2")
            p(f"s_add_u32 s61, s61, {64+2*ti+u}")
            p("s_lshl_b32 s61, s61, 11")
            p("s_add_u32 s61, s61, s60")
            p(f"buffer_store_dwordx4 v[{80+4*u}:{83+4*u}], v9, s[32:35], s61 offen")

    ffn_tile(0, 4)
    ffn_tile(1, 5)
    light = name + "_light"
    p("s_cmp_eq_u32 s30, 3")
    p(f"s_cbranch_scc1 {light}")
    p("s_barrier")
    ffn_tile(2, 6)
    ffn_tile(3, 7)
    p.label(light)
    if stamps:
        p("s_memtime s[84:85]")

    p("s_lshl_b32 s54, 1, s27")
    p("s_sub_u32 s54, s54, 1")
    p("s_lshl_b32 s55, s28, 2")
    p("v_mov_b32 v13, s55")
    p("s_mov_b32 s62, 0")
    poll = name + "_poll"
    pdone = name + "_pdone"
    p.label(poll)
    p("buffer_load_dword v12, v13, s[36:39], 0 offen sc0 sc1")
    p("s_waitcnt vmcnt(0)")
    p("v_readfirstlane_b32 s55, v12")
    p("s_and_b32 s55, s55, s54")
    p("s_cmp_eq_u32 s55, s54")
    p(f"s_cbranch_scc1 {pdone}")
    p("s_add_u32 s62, s62, 1")
    p("s_cmp_gt_u32 s62, 200000")
    p(f"s_cbranch_scc1 {pdone}")
    p("s_sleep 1")
    p(f"s_branch {poll}")
    p.label(pdone)
    if stamps:
        p("s_memtime s[86:87]")
    p("s_lshl_b32 s54, s28, 8")
    p(f"s_add_u32 s54, s54, {WS_E}")
    p("v_lshlrev_b32 v13, 3, v2")
    for j in range(15):
        p(f"buffer_load_dwordx2 v[{48+2*j}:{49+2*j}], v13, s[32:35], s54 offen sc0 sc1")
        p("s_add_u32 s54, s54, 4096")
    p("v_mov_b32 v80, 0")
    p("v_mov_b32 v81, 0")
    p("s_waitcnt vmcnt(0)")
    hdone = name + "_hdone"
    for j in range(15):
        p(f"s_cmp_le_u32 s27, {j}")
        p(f"s_cbranch_scc1 {hdone}")
        p(f"v_fma_f32 v82, v{A128_RE}, v80, v{48+2*j}")
        p(f"v_fma_f32 v83, v{A128_RE}, v81, v{49+2*j}")
        p(f"v_fma_f32 v82, -v{A128_IM}, v81, v82")
        p(f"v_fma_f32 v81, v{A128_IM}, v80, v83")
        p("v_mov_b32 v80, v82")
    p.label(hdone)
    p(f"v_fma_f32 v82, v{AS_RE}, v80, v104")
    p(f"v_fma_f32 v83, v{AS_RE}, v81, v105")
    p(f"v_fma_f32 v82, -v{AS_IM}, v81, v82")
    p(f"v_fma_f32 v81, v{AS_IM}, v80, v83")
    p("v_mov_b32 v80, v82")
    p("s_lshl_b32 s54, s24, 12")
    p(f"s_add_u32 s54, s54, {M_TB}")
    p("v_lshrrev_b32 v12, 2, v2")
    p("v_lshlrev_b32 v13, 1, v3")
    p("v_xor_b32 v12, v12, v13")
    p("v_and_b32 v13, 3, v2")
    p("v_lshlrev_b32 v13, 2, v13")
    p("v_lshl_add_u32 v13, v3, 9, v13")
    p("v_add_u32 v13, s54, v13")
    K0S = [0, 1, 4, 5]
    for i, k0 in enumerate(K0S):
        p(f"v_xor_b32 v14, {k0}, v12")
        p(f"v_lshl_add_u32 v{4+i}, v14, 4, v13")
    for r in range(16):
        a, b = r >> 2, r & 3
        k0 = 4 * (a & 1) + (b >> 1)
        p(f"v_fma_f32 v82, v{A_RE}, v80, v{16+r}")
        p(f"v_fma_f32 v83, v{A_RE}, v81, v{32+r}")
        p(f"v_fma_f32 v82, -v{A_IM}, v81, v82")
        p(f"v_fma_f32 v81, v{A_IM}, v80, v83")
        p("v_mov_b32 v80, v82")
        p(f"v_mul_f32 v84, v{C_RE}, v80")
        p(f"v_mul_f32 v85, v{C_RE}, v81")
        p(f"v_fma_f32 v84, -v{C_IM}, v81, v84")
        p(f"v_fma_f32 v85, -v{C_IM}, v80, -v85")
        p(f"v_cvt_pk_bf16_f32 v{48+r}, v84, v85")
        p(f"ds_write_b32 v{4+K0S.index(k0)}, v{48+r} offset:{(8*a+b)*128}")
    p("v_bfe_u32 v12, v2, 1, 3")
    p("v_xor_b32 v12, v12, v3")
    p("v_lshlrev_b32 v12, 4, v12")
    p("v_lshl_add_u32 v12, v2, 7, v12")
    p("v_add_u32 v12, s54, v12")
    p("s_waitcnt lgkmcnt(0)")
    for u in range(4):
        p(f"v_xor_b32 v13, {32*u}, v12")
        p(f"ds_read_b128 v[{64+4*u}:{67+4*u}], v13")
    for u in range(4):
        p("s_lshl_b32 s61, s28, 2")
        p(f"s_add_u32 s61, s61, {u}")
        p("s_lshl_b32 s61, s61, 11")
        p("s_add_u32 s61, s61, s60")
        p(f"buffer_store_dwordx4 v[{64+4*u}:{67+4*u}], v9, s[32:35], s61 offen")
    if stamps:
        p("s_waitcnt vmcnt(0)")
        p("s_memtime s[88:89]")
        p("s_waitcnt lgkmcnt(0)")
        p("s_lshl_b32 s19, s2, 2")
        p("s_add_u32 s19, s19, s24")
        p("s_lshl_b32 s19, s19, 6")
        p("s_add_u32 s19, s19, 0x4000000")
        add64(p, 64, 65, 22, 23, "s19")
        srd(p, 68, 64, 65, 64)
        for i, r in enumerate([80, 82, 84, 86, 88]):
            p(f"v_mov_b32 v{64+i}, s{r}")
        p("v_mov_b32 v70, 0")
        p("s_mov_b64 exec, 1")
        p("buffer_store_dwordx4 v[64:67], v70, s[68:71], 0 offen")
        p("buffer_store_dword v68, v70, s[68:71], 0 offen offset:16")
    p("s_endpgm")

    p.label(name + "_loader")
    p("s_waitcnt lgkmcnt(0)")
    p("s_sub_u32 s24, s24, 4")
    srd(p, 32, 4, 5, 2048 * 1024)
    p("s_cmp_ge_u32 s24, 2")
    p("s_cselect_b32 s36, s12, s10")
    p("s_cselect_b32 s37, s13, s11")
    p("s_and_b32 s37, s37, 0xffff")
    p("s_mov_b32 s38, 0x80000")
    p("s_mov_b32 s39, 0x00020000")
    srd(p, 40, 16, 17, 512 * 3584)
    srd(p, 44, 22, 23, WS_END)
    srd(p, 48, 18, 19, 3584)
    p("v_and_b32 v2, 7, v1")
    p("v_lshrrev_b32 v3, 4, v1")
    p("v_xor_b32 v2, v2, v3")
    p("v_lshlrev_b32 v2, 4, v2")
    p("v_lshrrev_b32 v3, 5, v1")
    p("v_lshlrev_b32 v3, 4, v3")
    p("v_bfe_u32 v4, v1, 3, 2")
    p("v_add_u32 v3, v3, v4")
    p("s_lshl_b32 s52, s24, 5")
    p("v_add_u32 v3, s52, v3")
    p("v_lshl_add_u32 v5, v3, 10, v2")
    p("v_xor_b32 v6, 64, v5")
    p("v_lshrrev_b32 v3, 3, v1")
    p("v_lshl_add_u32 v7, v3, 10, v2")
    p("v_xor_b32 v8, 64, v7")
    p("s_movk_i32 s53, 3584")
    p("v_mul_lo_u32 v9, v3, s53")
    p("v_bfe_u32 v4, v1, 4, 1")
    p("v_lshlrev_b32 v4, 2, v4")
    p("v_and_b32 v10, 7, v1")
    p("v_xor_b32 v4, v4, v10")
    p("v_lshl_add_u32 v9, v4, 4, v9")
    p("s_lshl_b32 s54, s27, 17")
    p("s_lshl_b32 s55, s28, 5")
    p("s_and_b32 s56, s24, 1")
    p("s_lshl_b32 s56, s56, 4")
    p("s_add_u32 s55, s55, s56")
    p("s_lshl_b32 s55, s55, 10")
    p("s_lshl_b32 s57, s24, 12")
    p("s_lshl_b32 s58, s24, 11")
    p("s_lshl_b32 s59, s29, 6")
    p("s_add_u32 s59, s59, s52")
    p("v_and_b32 v11, 31, v1")
    p("v_add_u32 v11, s59, v11")
    p("v_lshlrev_b32 v12, 2, v11")
    p("v_lshlrev_b32 v13, 1, v11")
    p(f"s_mov_b32 s60, {WS_COLSUM+4096}")
    p("s_movk_i32 s61, 1792")
    p("v_cmp_gt_u32 vcc, s61, v11")
    p("v_cndmask_b32 v12, 0, v12, vcc")
    p("buffer_load_dword v14, v12, s[44:47], s60 offen")
    p("buffer_load_ushort v15, v13, s[48:51], 0 offen")

    def dma(m0_txt_base, m0_add, voff, srdn, soff_base, soff_add):
        p(f"s_add_u32 m0, {m0_txt_base}, {m0_add}")
        p(f"s_add_u32 s62, {soff_base}, {soff_add}")
        p(f"buffer_load_dwordx4 v{voff}, s[{srdn}:{srdn+3}], s62 offen lds")

    def stage(s):
        base = (s % 4) * SLOT
        for i in range(4):
            dma("s57", base + i * 1024, 5 + (i & 1), 32, "s54", s * 128 + i * 4096)
        for i in range(2):
            dma("s58", base + 16384 + i * 1024, 7 + i, 36, "s55", s * 128 + i * 8192)

    def unit(un, ldsbase):
        p("s_lshl_b32 s63, s24, 14")
        p(f"s_add_u32 s63, s63, {ldsbase}")
        p(f"s_mul_i32 s64, s24, {16*8*3584}")
        p("s_lshl_b32 s65, s29, 7")
        p("s_add_u32 s64, s64, s65")
        for i in range(16):
            dma("s63", i * 1024, 9, 40, "s64", i * 8 * 3584 + un * 128)

    for s in range(4):
        stage(s)
    p("s_waitcnt vmcnt(18)"); p("s_barrier")
    p("s_waitcnt vmcnt(12)"); p("s_barrier")
    stage(4)
    p("s_waitcnt vmcnt(12)"); p("s_barrier")
    stage(5)
    p("s_waitcnt vmcnt(12)"); p("s_barrier")
    stage(6)
    p("s_waitcnt vmcnt(12)"); p("s_barrier")
    stage(7)
    unit(0, U0)
    p("s_waitcnt vmcnt(28)"); p("s_barrier")
    p("s_waitcnt vmcnt(22)"); p("s_barrier")
    p("s_waitcnt vmcnt(16)"); p("s_barrier")
    p("s_barrier")
    p("v_lshlrev_b32 v15, 16, v15")
    p("v_and_b32 v11, 31, v1")
    p("v_lshlrev_b32 v11, 2, v11")
    p("s_lshl_b32 s59, s24, 7")
    p(f"s_add_u32 s59, s59, {M_TAB}")
    p("v_add_u32 v11, s59, v11")
    p("ds_write_b32 v11, v14")
    p("ds_write_b32 v11, v15 offset:512")
    lightl = name + "_lightl"
    p("s_cmp_eq_u32 s30, 3")
    p(f"s_cbranch_scc1 {lightl}")
    unit(1, 0)
    p("s_waitcnt vmcnt(16) lgkmcnt(0)"); p("s_barrier")
    p("s_waitcnt vmcnt(0)"); p("s_barrier")
    p("s_endpgm")
    p.label(lightl)
    p("s_waitcnt vmcnt(0) lgkmcnt(0)"); p("s_barrier")
    p.label(end)
    p("s_endpgm")
    code = kernel_header(name) + finalize(p)
    desc = kernel_desc(name, 256, 96, 128)
    return code, desc, 163840
```

```python
from asmlib import *
from layout import *

KA = dict(x=0, lre=8, lim=16, bre=24, bim=32, cre=40, cim=48, ldt=56, dsk=64, bx=72, w1=80, b1=88, w2=96, b2=104,
          out=112, dbg=120, ws=128)


def srd(p, d, base_lo, base_hi, nbytes):
    p(f"s_mov_b32 s{d}, s{base_lo}")
    p(f"s_and_b32 s{d+1}, s{base_hi}, 0xffff")
    p(f"s_mov_b32 s{d+2}, {nbytes}")
    p(f"s_mov_b32 s{d+3}, 0x00020000")


def add64(p, dlo, dhi, slo, shi, off):
    p(f"s_add_u32 s{dlo}, s{slo}, {off}")
    p(f"s_addc_u32 s{dhi}, s{shi}, 0")


def kernel_header(name):
    return f""".globl {name}
.p2align 8
.type {name},@function
{name}:
"""


def kernel_desc(name, vgpr, sgpr, accum, ):
    return f""".amdhsa_kernel {name}
  .amdhsa_next_free_vgpr {vgpr}
  .amdhsa_next_free_sgpr {sgpr}
  .amdhsa_accum_offset {accum}
  .amdhsa_group_segment_fixed_size 0
  .amdhsa_kernarg_size 136
  .amdhsa_user_sgpr_count 2
  .amdhsa_user_sgpr_kernarg_segment_ptr 1
  .amdhsa_system_sgpr_workgroup_id_x 1
.end_amdhsa_kernel
"""


def gen_k2(name="k2_kernel", DEPTH=8, NW=4, force_rg0=False, force_cg0=False, stamps=False, nomfma=False):
    p = Prog()
    STEPS = NSTEP // NW
    end = name + "_end"
    p(f"s_cmp_ge_u32 s2, 256")
    p(f"s_cbranch_scc1 {end}")
    if stamps:
        p("s_memtime s[60:61]")
        p("s_memrealtime s[62:63]")
    p(f"s_load_dwordx2 s[4:5], s[0:1], {KA['x']}")
    p(f"s_load_dwordx2 s[6:7], s[0:1], {KA['dsk']}")
    p(f"s_load_dwordx4 s[8:11], s[0:1], {KA['b2']}")
    p(f"s_load_dwordx2 s[12:13], s[0:1], {KA['ws']}")
    p("v_lshrrev_b32 v1, 6, v0")
    p("v_and_b32 v2, 63, v0")
    p("v_readfirstlane_b32 s14, v1")
    p("s_and_b32 s15, s2, 7")
    p("s_lshr_b32 s16, s2, 3")
    p("s_lshr_b32 s17, s16, 3")
    p("s_lshl_b32 s15, s15, 2")
    p("s_add_u32 s17, s17, s15")
    p("s_and_b32 s18, s16, 7")
    if force_rg0: p("s_mov_b32 s17, 0")
    if force_cg0: p("s_mov_b32 s18, 0")
    p("s_waitcnt lgkmcnt(0)")
    p(f"s_mul_i32 s19, s17, {NSTEP*2048}")
    p(f"s_add_u32 s19, s19, {WS_H}")
    add64(p, 48, 49, 12, 13, "s19")
    srd(p, 20, 48, 49, NSTEP * 2048)
    p(f"s_mul_i32 s19, s18, {NSTEP*2048}")
    p(f"s_add_u32 s19, s19, {WS_WC}")
    add64(p, 48, 49, 12, 13, "s19")
    srd(p, 24, 48, 49, NSTEP * 2048)
    p("s_lshl_b32 s19, s17, 16")
    p("s_lshl_b32 s50, s18, 7")
    p("s_add_u32 s19, s19, s50")
    add64(p, 48, 49, 4, 5, "s19")
    srd(p, 28, 48, 49, 65536 - 0)
    p("s_sub_u32 s30, 65536, s50")
    p("s_lshl_b32 s19, s17, 9")
    p(f"s_add_u32 s19, s19, {WS_STATS}")
    add64(p, 48, 49, 12, 13, "s19")
    srd(p, 32, 48, 49, 512)
    add64(p, 48, 49, 6, 7, "s50")
    srd(p, 36, 48, 49, 128)
    add64(p, 48, 49, 8, 9, "s50")
    srd(p, 40, 48, 49, 128)
    p("s_lshl_b32 s19, s17, 17")
    p("s_lshl_b32 s51, s18, 8")
    p("s_add_u32 s19, s19, s51")
    add64(p, 48, 49, 10, 11, "s19")
    srd(p, 44, 48, 49, 131072)
    p("s_sub_u32 s46, 131072, s51")
    p("v_lshlrev_b32 v3, 4, v2")
    p("v_lshrrev_b32 v4, 4, v2")
    p("v_and_b32 v5, 15, v2")
    p("s_lshl_b32 s52, s14, 4")
    p("v_add_u32 v6, s52, v4")
    p("v_lshlrev_b32 v7, 10, v6")
    p("v_lshl_add_u32 v7, v5, 3, v7")
    p("v_lshlrev_b32 v8, 3, v6")
    p("v_lshlrev_b32 v9, 3, v5")
    p("v_lshlrev_b32 v10, 11, v6")
    p("v_lshl_add_u32 v10, v5, 4, v10")
    p(f"s_mul_i32 s53, s14, {STEPS*2048}")
    FB = 64
    def slot(st, i):
        b = FB + (st % DEPTH) * 16 + i * 4
        return f"v[{b}:{b+3}]"
    def loads(st):
        off = (st & 1) * 2048
        p(f"buffer_load_dwordx4 {slot(st,0)}, v3, s[20:23], s53 offen offset:{off}")
        p(f"buffer_load_dwordx4 {slot(st,2)}, v3, s[24:27], s53 offen offset:{off}")
        p(f"buffer_load_dwordx4 {slot(st,1)}, v3, s[20:23], s53 offen offset:{off+1024}")
        p(f"buffer_load_dwordx4 {slot(st,3)}, v3, s[24:27], s53 offen offset:{off+1024}")
        if st & 1:
            p("s_add_u32 s53, s53, 4096")
    loads(0); loads(1)
    for q in range(4):
        p(f"s_mov_b32 s54, {q*4096}")
        p(f"buffer_load_dwordx2 v[{12+2*q}:{13+2*q}], v7, s[28:31], s54 offen")
        p(f"buffer_load_dwordx2 v[{20+2*q}:{21+2*q}], v8, s[32:35], 0 offen offset:{q*32}")
    p("buffer_load_dwordx2 v[28:29], v9, s[36:39], 0 offen")
    p("buffer_load_dwordx2 v[30:31], v9, s[40:43], 0 offen")
    for st in range(2, DEPTH):
        loads(st)
    p("v_and_b32 v50, 31, v2")
    p("v_lshrrev_b32 v51, 5, v2")
    p("v_bfe_u32 v52, v50, 2, 1")
    p("v_lshlrev_b32 v53, 4, v52")
    p("v_lshrrev_b32 v54, 3, v50")
    p("v_lshl_add_u32 v53, v54, 2, v53")
    p("v_and_b32 v54, 3, v50")
    p("v_add_u32 v53, v53, v54")
    p("v_lshl_add_u32 v54, v52, 2, v54")
    p("s_lshl_b32 s55, s14, 14")
    p("v_lshlrev_b32 v53, 8, v53")
    p("v_add_u32 v53, s55, v53")
    for a in range(4):
        p(f"v_add_u32 v55, {2*a}, v51")
        p("v_xor_b32 v55, v55, v54")
        p(f"v_lshl_add_u32 v{56+a}, v55, 4, v53")
    p("s_and_b32 s56, s14, 1")
    p("s_lshl_b32 s56, s56, 2")
    p("v_or_b32 v55, s56, v4")
    p("v_xor_b32 v55, v55, v5")
    p("v_lshlrev_b32 v60, 8, v6")
    p("v_lshl_add_u32 v60, v55, 4, v60")
    DK = [48, 49, 50, 51]
    B2 = [52, 53, 54, 55]
    p("v_lshlrev_b32 v48, 16, v28")
    p("v_and_b32 v49, 0xffff0000, v28")
    p("v_lshlrev_b32 v50, 16, v29")
    p("v_and_b32 v51, 0xffff0000, v29")
    p("v_lshlrev_b32 v52, 16, v30")
    p("v_and_b32 v53, 0xffff0000, v30")
    p("v_lshlrev_b32 v54, 16, v31")
    p("v_and_b32 v55, 0xffff0000, v31")
    for q in range(4):
        xr = [32 + 4 * q + i for i in range(4)]
        m_, rs = 20 + 2 * q, 21 + 2 * q
        t = [28, 29, 30, 31]
        p(f"v_lshlrev_b32 v{xr[0]}, 16, v{12+2*q}")
        p(f"v_and_b32 v{xr[1]}, 0xffff0000, v{12+2*q}")
        p(f"v_lshlrev_b32 v{xr[2]}, 16, v{13+2*q}")
        p(f"v_and_b32 v{xr[3]}, 0xffff0000, v{13+2*q}")
        for i in range(4):
            p(f"v_sub_f32 v{t[i]}, v{xr[i]}, v{m_}")
        def rnd():
            p(f"v_cvt_pk_bf16_f32 v61, v{t[0]}, v{t[1]}")
            p(f"v_cvt_pk_bf16_f32 v62, v{t[2]}, v{t[3]}")
            p(f"v_lshlrev_b32 v{t[0]}, 16, v61")
            p(f"v_and_b32 v{t[1]}, 0xffff0000, v61")
            p(f"v_lshlrev_b32 v{t[2]}, 16, v62")
            p(f"v_and_b32 v{t[3]}, 0xffff0000, v62")
        rnd()
        for i in range(4):
            p(f"v_mul_f32 v{t[i]}, v{t[i]}, v{rs}")
        rnd()
        for i in range(4):
            p(f"v_mul_f32 v{t[i]}, v{t[i]}, v{DK[i]}")
        rnd()
        for i in range(4):
            p(f"v_add_f32 v{xr[i]}, v{xr[i]}, v{t[i]}")
            p(f"v_add_f32 v{xr[i]}, v{xr[i]}, v{B2[i]}")
    for st in range(STEPS):
        for dt in range(2):
            for rt in range(2):
                acc = (dt * 2 + rt) * 16
                c = "0" if st == 0 else f"a[{acc}:{acc+15}]"
                if nomfma and st > 0 and (dt + rt) > 0:
                    continue
                if nomfma and st > 0:
                    p(f"v_or_b32 v61, v{FB + (st % DEPTH) * 16}, v{FB + (st % DEPTH) * 16 + 4}")
                    p(f"v_or_b32 v62, v{FB + (st % DEPTH) * 16 + 8}, v{FB + (st % DEPTH) * 16 + 12}")
                    continue
                p(f"v_mfma_f32_32x32x16_bf16 a[{acc}:{acc+15}], {slot(st,2+dt)}, {slot(st,rt)}, {c}")
        if stamps and st == 0:
            p("s_memtime s[64:65]")
        if st + DEPTH < STEPS:
            loads(st + DEPTH)
    if stamps:
        p("s_memtime s[66:67]")
    for dt in range(2):
        for rt in range(2):
            acc = (dt * 2 + rt) * 16
            for a in range(4):
                p(f"ds_write_b128 v{56+a}, a[{acc+4*a}:{acc+4*a+3}] offset:{rt*8192 + dt*128}")
    p("s_waitcnt lgkmcnt(0)")
    p("s_barrier")
    for q in range(4):
        for w in range(4):
            b = 64 + (q * 4 + w) * 4
            p(f"ds_read_b128 v[{b}:{b+3}], v60 offset:{w*16384 + q*1024}")
    for q in range(4):
        for w in range(4):
            b = 64 + (q * 4 + w) * 4
            for i in range(4):
                p(f"v_add_f32 v{32+4*q+i}, v{32+4*q+i}, v{b+i}")
        p(f"s_mov_b32 s54, {q*8192}")
        p(f"buffer_store_dwordx4 v[{32+4*q}:{35+4*q}], v10, s[44:47], s54 offen")
    if stamps:
        p("s_waitcnt vmcnt(0)")
        p("s_memtime s[68:69]")
        p("s_memrealtime s[70:71]")
        p("s_waitcnt lgkmcnt(0)")
        p("s_lshl_b32 s19, s2, 2")
        p("s_add_u32 s19, s19, s14")
        p("s_lshl_b32 s19, s19, 6")
        p("s_add_u32 s19, s19, 0x4000000")
        add64(p, 48, 49, 12, 13, "s19")
        srd(p, 72, 48, 49, 64)
        for i, r in enumerate([60, 64, 66, 68, 62, 70]):
            p(f"v_mov_b32 v{64+i}, s{r}")
        p("v_mov_b32 v70, 0")
        p("v_cmp_eq_u32 vcc, 0, v2")
        p("s_and_saveexec_b64 s[76:77], vcc")
        p("buffer_store_dwordx4 v[64:67], v70, s[72:75], 0 offen")
        p("buffer_store_dwordx2 v[68:69], v70, s[72:75], 0 offen offset:16")
    p.label(end)
    p("s_endpgm")
    nv = FB + DEPTH * 16
    accum = (max(nv, 128) + 3) // 4 * 4
    code = kernel_header(name) + finalize(p)
    desc = kernel_desc(name, accum + 64, 80, accum)
    return code, desc, 65536
```

```python
import numpy as np
L=2048; D=512; P=512; F=1792
NSTEP=176
WS_H=0
WS_H_BYTES=32*NSTEP*2*1024
WS_WC=WS_H+WS_H_BYTES
WS_WC_BYTES=8*NSTEP*2*1024
WS_STATS=WS_WC+WS_WC_BYTES
WS_STATS_BYTES=2048*8
WS_COLSUM=WS_STATS+WS_STATS_BYTES
WS_COLSUM_BYTES=2816*4
WS_E=WS_COLSUM+16384
WS_E_BYTES=16*16*256
WS_END=WS_E+WS_E_BYTES

def time_of_m(m):
    return 16*((m>>2)&1)+4*(m>>3)+(m&3)

def kidx(S, h, p):
    if S < 64:
        return ('ssm', 8*S+4*h+(p>>1), p&1)
    S2=S-64; T=S2>>1; u=S2&1
    return ('ffn', 32*T+16*u+8*(p>>2)+4*h+(p&3), 0)

def kperm():
    cols=np.zeros((NSTEP,2,8),dtype=np.int64)
    for S in range(NSTEP):
        for h in range(2):
            for p in range(8):
                k=kidx(S,h,p)
                cols[S,h,p]= (2*k[1]+k[2]) if k[0]=='ssm' else 1024+k[1]
    return cols

def pack_H(Hcat_bits):
    cols=kperm()
    m=np.arange(32); tm=np.array([time_of_m(i) for i in m])
    img=np.zeros((32,NSTEP,2,2,32,8),dtype=np.uint16)
    for rg in range(32):
        for sub in range(2):
            rows=64*rg+32*sub+tm
            blk=Hcat_bits[rows]
            img[rg,:,sub]=blk[:,cols].transpose(1,2,0,3)
    return img

def pack_WC(Wc_bits):
    cols=kperm()
    img=np.zeros((8,NSTEP,2,2,32,8),dtype=np.uint16)
    for cg in range(8):
        for dt in range(2):
            ds=64*cg+32*dt+np.arange(32)
            blk=Wc_bits[:,ds]
            img[cg,:,dt]=blk[cols].transpose(0,1,3,2)
    return img
```

```python
import sys
sys.path.insert(0, "dev")
from asmlib import *
from layout import *

def compose(kernels, header_comment=""):
    s = "; parallel_sum(ssm_conv_s5, dense_gelu) -- generated by own python generator\n"
    for (name, grid, block, code, desc, lds) in kernels:
        s += f"; @launch kernel={name} grid=({grid},1,1) block=({block},1,1) lds={lds}\n"
    s += '.amdgcn_target "amdgcn-amd-amdhsa--gfx950"\n.text\n'
    done = set()
    for (name, grid, block, code, desc, lds) in kernels:
        if name in done: continue
        done.add(name)
        s += code + "\n"
    s += '.section .rodata,"a"\n.p2align 6\n'
    done = set()
    for (name, grid, block, code, desc, lds) in kernels:
        if name in done: continue
        done.add(name)
        s += ".p2align 6\n" + desc
    return s

if __name__ == "__main__":
    which = sys.argv[1]
    outp = sys.argv[2]
    if which == "k2":
        from gen_k2 import gen_k2
        depth = int(sys.argv[3]) if len(sys.argv) > 3 else 8
        opts = sys.argv[4:]
        code, desc, lds = gen_k2(DEPTH=depth, force_rg0=("rg0" in opts), force_cg0=("cg0" in opts), stamps=("stamps" in opts), nomfma=("nomfma" in opts))
        open(outp, "w").write(compose([("k2_kernel", 256, 256, code, desc, lds)]))

    if which == "k0":
        from gen_k0 import gen_k0
        code, desc, lds = gen_k0()
        open(outp, "w").write(compose([("k0_kernel", 256, 256, code, desc, lds)]))
    if which == "all":
        from gen_k0 import gen_k0
        from gen_k1 import gen_k1
        from gen_k2 import gen_k2
        opts = sys.argv[3:]
        ks = []
        code, desc, lds = gen_k0(); ks.append(("k0_kernel", 256, 256, code, desc, lds))
        code, desc, lds = gen_k1(stamps=("stamps" in opts)); ks.append(("k1_kernel", 256, 512, code, desc, lds))
        code, desc, lds = gen_k2(); ks.append(("k2_kernel", 256, 256, code, desc, lds))
        open(outp, "w").write(compose(ks))
```

```python
import re

REG_RE = re.compile(r'(?<![\w.])([vas])(?:\[(\d+):(\d+)\]|(\d+))(?![\w])')
SPECIAL = ('vcc', 'exec', 'm0', 'scc')


def regs_of(tok):
    tok = tok.strip()
    neg = tok.lstrip('-')
    if neg.startswith('abs(') or neg.startswith('|'):
        neg = neg.replace('abs(', '').replace(')', '').replace('|', '')
    out = []
    m = REG_RE.fullmatch(neg)
    if m:
        k = m.group(1)
        if m.group(4) is not None:
            out.append((k, int(m.group(4))))
        else:
            for i in range(int(m.group(2)), int(m.group(3)) + 1):
                out.append((k, i))
        return out
    if neg in ('vcc', 'vcc_lo', 'vcc_hi'):
        return [('x', 'vcc')]
    if neg in ('exec', 'exec_lo', 'exec_hi'):
        return [('x', 'exec')]
    if neg == 'm0':
        return [('x', 'm0')]
    return []


TRANS = ('v_exp_f32', 'v_log_f32', 'v_rcp_f32', 'v_rsq_f32', 'v_sqrt_f32', 'v_sin_f32', 'v_cos_f32',
         'v_rcp_iflag_f32')
MFMA_PASSES = {'v_mfma_f32_4x4x4_16b_bf16': 2, 'v_mfma_f32_32x32x16_bf16': 8, 'v_mfma_f32_16x16x32_bf16': 4}
RMW_DST = ('v_fmac_f32', 'v_dot2c_f32_bf16', 'v_pk_fmac_f16', 'v_writelane_b32', 'v_mac_f32')


class Ins:
    __slots__ = ('text', 'op', 'kind', 'wr', 'rd', 'srcc', 'srcab', 'dpp', 'lds_dma', 'comment', 'nowaitregs')

    def __init__(self, text):
        self.text = text
        body = text.split(';')[0].strip()
        parts = body.split(None, 1)
        op = parts[0]
        self.op = op
        rest = parts[1] if len(parts) > 1 else ''
        ops = []
        cur = ''
        depth = 0
        for ch in rest:
            if ch in '[(':
                depth += 1
            if ch in '])':
                depth -= 1
            if ch == ',' and depth == 0:
                ops.append(cur.strip())
                cur = ''
            else:
                cur += ch
        if cur.strip():
            ops.append(cur.strip())
        mods = ''
        if ops:
            sp = ops[-1].split(None, 1)
            if len(sp) > 1:
                ops[-1] = sp[0]
                mods = sp[1]
        self.wr = []
        self.rd = []
        self.srcc = []
        self.srcab = []
        self.dpp = ('row_' in mods or 'quad_perm' in mods or 'wave_' in mods or 'row_' in rest)
        self.lds_dma = False
        base = op.replace('_e32', '').replace('_e64', '').replace('_dpp', '').replace('_sdwa', '')
        R = regs_of
        if op.startswith('v_mfma'):
            self.kind = 'mfma'
            self.wr = R(ops[0])
            self.srcab = R(ops[1]) + R(ops[2])
            self.srcc = R(ops[3])
            self.rd = self.srcab + self.srcc
        elif op.startswith('v_cmp'):
            self.kind = 'valu'
            self.wr = R(ops[0])
            if op.startswith('v_cmpx'):
                self.wr += [('x', 'exec')]
            for o in ops[1:]:
                self.rd += R(o)
        elif base in ('v_readfirstlane_b32', 'v_readlane_b32'):
            self.kind = 'valu'
            self.wr = R(ops[0])
            for o in ops[1:]:
                self.rd += R(o)
        elif base.startswith('v_permlane') and 'swap' in base:
            self.kind = 'valu'
            self.wr = R(ops[0]) + R(ops[1])
            self.rd = R(ops[0]) + R(ops[1])
        elif base in ('v_add_co_u32', 'v_sub_co_u32', 'v_addc_co_u32', 'v_subb_co_u32', 'v_subrev_co_u32',
                      'v_mad_u64_u32', 'v_div_scale_f32'):
            self.kind = 'valu'
            self.wr = R(ops[0]) + R(ops[1])
            for o in ops[2:]:
                self.rd += R(o)
        elif op.startswith('v_'):
            self.kind = 'trans' if base in TRANS else 'valu'
            self.wr = R(ops[0])
            for o in ops[1:]:
                self.rd += R(o)
            if base in RMW_DST or base.startswith('v_fmac') or base.startswith('v_dot2c'):
                self.rd += R(ops[0])
            if self.dpp or 'op_sel' in mods and False:
                self.rd += R(ops[0])
        elif op.startswith('ds_'):
            self.kind = 'ds'
            if op.startswith('ds_read') or op.startswith('ds_bpermute') or op.startswith('ds_permute') or op.startswith('ds_swizzle'):
                self.wr = R(ops[0])
                for o in ops[1:]:
                    self.rd += R(o)
            else:
                for o in ops:
                    self.rd += R(o)
        elif op.startswith('buffer_') or op.startswith('global_'):
            self.kind = 'vmem'
            lds = bool(re.search(r'\blds\b', mods)) or '_lds_' in op
            self.lds_dma = lds
            if 'load' in op and not lds:
                self.wr = R(ops[0])
                if '_d16' in op:
                    self.rd += R(ops[0])
                for o in ops[1:]:
                    self.rd += R(o)
            elif 'atomic' in op and re.search(r'\bsc0\b', mods):
                if op.startswith('buffer_'):
                    self.wr = R(ops[0])
                    for o in ops:
                        self.rd += R(o)
                else:
                    self.wr = R(ops[0])
                    for o in ops[1:]:
                        self.rd += R(o)
            else:
                for o in ops:
                    self.rd += R(o)
            if lds:
                self.rd.append(('x', 'm0'))
        elif op.startswith('s_load') or op.startswith('s_buffer_load') or op in ('s_memtime', 's_memrealtime'):
            self.kind = 'smem'
            self.wr = R(ops[0])
            for o in ops[1:]:
                self.rd += R(o)
        elif op.startswith('s_'):
            self.kind = 'salu'
            nodst = ('s_cmp', 's_waitcnt', 's_barrier', 's_branch', 's_cbranch', 's_nop', 's_endpgm', 's_sleep',
                     's_setprio', 's_bitcmp', 's_setreg', 's_sethalt', 's_sendmsg')
            if any(op.startswith(p) for p in nodst):
                for o in ops:
                    self.rd += R(o)
            else:
                self.wr = R(ops[0])
                for o in ops[1:]:
                    self.rd += R(o)
                if 'saveexec' in op:
                    self.wr.append(('x', 'exec'))
                    self.rd.append(('x', 'exec'))
                if op.startswith('s_addk') or op.startswith('s_mulk'):
                    self.rd += R(ops[0])
        else:
            raise ValueError('unknown instruction ' + text)


def is_valu(i):
    return i.kind in ('valu', 'trans')


class Prog:
    def __init__(self):
        self.items = []

    def I(self, text):
        for t in text.strip().split('\n'):
            t = t.strip()
            if not t:
                continue
            if t.startswith(';'):
                self.items.append(t)
            else:
                self.items.append(Ins(t))

    __call__ = I

    def label(self, name):
        self.items.append(name + ':')

    def raw(self, text):
        self.items.append(text)

    def mark(self, name):
        self.items.append(';@mark ' + name)

    def waitvm(self, name, lgkm=True):
        self.items.append(';@waitvm ' + name + (' lgkm' if lgkm else ''))

    def nocount(self):
        self.items.append(';@nocount')

    def extend(self, other):
        self.items += other.items


def need_states(prev, cur):
    n = 0
    pw = set(prev.wr)
    cr = set(cur.rd)
    cw = set(cur.wr)
    if prev.kind == 'mfma':
        p = MFMA_PASSES[prev.op]
        if cur.kind == 'mfma':
            if pw & set(cur.srcc):
                if set(prev.wr) == set(cur.srcc) and prev.op == cur.op:
                    n = max(n, 0)
                else:
                    n = max(n, p + 2)
            if pw & set(cur.srcab):
                n = max(n, p + 4)
            if (pw & cw) and not (pw & set(cur.srcc)):
                n = max(n, p + 2)
        else:
            if cur.kind in ('valu', 'trans', 'vmem', 'ds'):
                if pw & (cr | cw):
                    n = max(n, p + 4)
                if is_valu(cur) and (set(prev.srcc) & cw):
                    n = max(n, p - 1)
    elif is_valu(prev):
        vw = {r for r in pw if r[0] in 'va'}
        sw = {r for r in pw if r[0] == 's' or r == ('x', 'vcc')}
        if cur.kind == 'mfma':
            if vw & cr:
                n = max(n, 2)
            if ('x', 'exec') in pw:
                n = max(n, 4)
        if prev.kind == 'trans' and is_valu(cur) and (vw & (cr | cw)):
            n = max(n, 1)
        if prev.kind == 'trans' and cur.kind in ('mfma', 'vmem', 'ds') and (vw & cr):
            n = max(n, 2)
        if is_valu(cur):
            if sw & cr:
                n = max(n, 2)
                if cur.op.startswith('v_readlane') or cur.op.startswith('v_writelane'):
                    n = max(n, 4)
            if cur.dpp and (vw & cr):
                n = max(n, 2)
            if cur.op.startswith('v_permlane') and (vw & cr):
                n = max(n, 2)
            if (cur.op.startswith('v_readfirstlane') or cur.op.startswith('v_readlane')) and (vw & cr):
                n = max(n, 1)
            if ('x', 'exec') in pw:
                n = max(n, 5 if cur.dpp else (4 if cur.op.startswith('v_readlane') or cur.op.startswith('v_readfirstlane') or cur.op.startswith('v_permlane') else 2))
        if cur.kind == 'vmem' and (sw & cr):
            n = max(n, 5)
        if cur.kind in ('salu', 'smem') and (sw & cr):
            n = max(n, 3)
        if cur.kind in ('salu',) and cur.op.startswith('s_cbranch_vcc') and ('x', 'vcc') in pw:
            n = max(n, 5)
        if cur.kind in ('salu',) and cur.op.startswith('s_cbranch_exec') and ('x', 'exec') in pw:
            n = max(n, 5)
    elif prev.kind == 'vmem':
        if ('store' in prev.op or 'atomic' in prev.op) and ('x3' in prev.op or 'x4' in prev.op or 'cmpswap' in prev.op):
            if cw & {r for r in prev.rd if r[0] in 'va'}:
                n = max(n, 2)
    elif prev.kind == 'ds':
        if prev.op.startswith('ds_write') and ('b128' in prev.op or 'b96' in prev.op or 'b64' in prev.op):
            if is_valu(cur) and (cw & {r for r in prev.rd if r[0] in 'va'}):
                n = max(n, 2)
    elif prev.kind == 'salu':
        if ('x', 'm0') in pw and (cur.lds_dma or cur.op.startswith('s_sendmsg')):
            n = max(n, 1)
    return n


MAXWIN = 20


def finalize(prog, check_only=False):
    out = []
    hist = []
    states = 0
    vm_issued = 0
    vm_done = 0
    lg_issued = 0
    lg_done = 0
    smem_pending = False
    pend_vm = {}
    pend_lg = {}
    pend_sm = set()
    carry = False
    marks = {}
    nocount = 0
    nocount_next = False
    marks_nc = {}

    def emit(txt):
        out.append('    ' + txt)

    def wait(vm=None, lg=None):
        nonlocal vm_done, lg_done, smem_pending, states
        parts = []
        if vm is not None:
            n = min(vm, 63)
            parts.append('vmcnt(%d)' % n)
            vm_done = max(vm_done, vm_issued - n)
        if lg is not None:
            n = min(lg, 15)
            parts.append('lgkmcnt(%d)' % n)
            if n == 0:
                smem_pending = False
                pend_sm.clear()
                lg_done = lg_issued
            elif not smem_pending:
                lg_done = max(lg_done, lg_issued - n)
        emit('s_waitcnt ' + ' '.join(parts))
        states += 1
        purge()

    def purge():
        for r in [r for r, i in pend_vm.items() if i < vm_done]:
            del pend_vm[r]
        for r in [r for r, i in pend_lg.items() if i < lg_done]:
            del pend_lg[r]

    def flush_all():
        vm = 0 if pend_vm else None
        lg = 0 if (pend_lg or pend_sm) else None
        if pend_vm:
            vm = vm_issued - (max(pend_vm.values()) + 1)
        if vm is not None or lg is not None:
            wait(vm, lg)

    for it in prog.items:
        if isinstance(it, str):
            s = it.strip()
            if s == ';@carry':
                carry = True
                continue
            if s.startswith(';@mark'):
                marks[s.split()[1]] = (vm_issued, nocount)
                continue
            if s == ';@nocount':
                nocount_next = True
                continue
            if s.startswith(';@waitvm'):
                tk = s.split()
                mi, mn = marks[tk[1]]
                n = (vm_issued - mi) - (nocount - mn)
                assert n >= 0
                lg = 0 if 'lgkm' in tk else None
                parts = ['vmcnt(%d)' % min(n, 63)]
                vm_done = max(vm_done, vm_issued - min(n, 63))
                if lg is not None:
                    parts.append('lgkmcnt(0)')
                    smem_pending = False
                    pend_sm.clear()
                    lg_done = lg_issued
                emit('s_waitcnt ' + ' '.join(parts))
                states += 1
                purge()
                continue
            if s.endswith(':') and not s.startswith(';'):
                if not carry:
                    flush_all()
                carry = False
                out.append(s)
                hist = []
                continue
            out.append('    ' + s)
            continue
        ins = it
        if ins.op == 's_waitcnt':
            m = re.search(r'vmcnt\((\d+)\)', ins.text)
            if m:
                vm_done = max(vm_done, vm_issued - int(m.group(1)))
            m = re.search(r'lgkmcnt\((\d+)\)', ins.text)
            if m:
                n = int(m.group(1))
                if n == 0:
                    smem_pending = False
                    pend_sm.clear()
                    lg_done = lg_issued
                elif not smem_pending:
                    lg_done = max(lg_done, lg_issued - n)
            purge()
            emit(ins.text)
            states += 1
            continue
        if ins.op.startswith('s_cbranch') or ins.op == 's_branch' or ins.op == 's_endpgm':
            if ins.op != 's_endpgm' and not carry:
                flush_all()
            carry = False
        touched = set(ins.rd) | set(ins.wr)
        vm = None
        lg = None
        for r in touched:
            if r in pend_vm:
                if ins.kind == 'vmem' and r in ins.wr and r not in ins.rd:
                    continue
                need = vm_issued - (pend_vm[r] + 1)
                vm = need if vm is None else min(vm, need)
            if r in pend_lg:
                if ins.kind == 'ds' and r in ins.wr and r not in ins.rd:
                    continue
                need = lg_issued - (pend_lg[r] + 1)
                if smem_pending:
                    need = 0
                lg = need if lg is None else min(lg, need)
            if r in pend_sm:
                lg = 0
        if vm is not None or lg is not None:
            wait(vm, lg)
        req = 0
        for (p, at) in hist:
            dist = states - at - 1
            n = need_states(p, ins)
            if n - dist > req:
                req = n - dist
        while req > 0:
            k = min(req, 16)
            emit('s_nop %d' % (k - 1))
            states += k
            req -= k
        emit(ins.text)
        hist.append((ins, states))
        if ins.op == 's_nop':
            states += int(ins.text.split()[1]) + 1
        else:
            states += 1
        hist = [(p, at) for (p, at) in hist if states - at <= MAXWIN]
        if ins.kind == 'vmem':
            if nocount_next:
                for r in ins.wr:
                    pend_vm[r] = vm_issued - 1
                nocount_next = False
            else:
                for r in ins.wr:
                    pend_vm[r] = vm_issued
                vm_issued += 1
        elif ins.kind == 'ds':
            for r in ins.wr:
                pend_lg[r] = lg_issued
            lg_issued += 1
        elif ins.kind == 'smem':
            for r in ins.wr:
                pend_sm.add(r)
            smem_pending = True
            lg_issued += 1
    return '\n'.join(out) + '\n'


def interleave(main, side, ratio_slots):
    out = []
    j = 0
    for i, m in enumerate(main):
        out.append(m)
        k = ratio_slots(i, m)
        for _ in range(k):
            if j < len(side):
                out.append(side[j])
                j += 1
    out += side[j:]
    return out
```

```python
import sys
sys.path.insert(0, "dev")
from asmlib import *
from layout import *

def compose(kernels, header_comment=""):
    s = "; parallel_sum(ssm_conv_s5, dense_gelu) -- generated by own python generator\n"
    for (name, grid, block, code, desc, lds) in kernels:
        s += f"; @launch kernel={name} grid=({grid},1,1) block=({block},1,1) lds={lds}\n"
    s += '.amdgcn_target "amdgcn-amd-amdhsa--gfx950"\n.text\n'
    done = set()
    for (name, grid, block, code, desc, lds) in kernels:
        if name in done: continue
        done.add(name)
        s += code + "\n"
    s += '.section .rodata,"a"\n.p2align 6\n'
    done = set()
    for (name, grid, block, code, desc, lds) in kernels:
        if name in done: continue
        done.add(name)
        s += ".p2align 6\n" + desc
    return s

if __name__ == "__main__":
    which = sys.argv[1]
    outp = sys.argv[2]
    if which == "k2":
        from gen_k2 import gen_k2
        depth = int(sys.argv[3]) if len(sys.argv) > 3 else 8
        opts = sys.argv[4:]
        code, desc, lds = gen_k2(DEPTH=depth, force_rg0=("rg0" in opts), force_cg0=("cg0" in opts), stamps=("stamps" in opts), nomfma=("nomfma" in opts))
        open(outp, "w").write(compose([("k2_kernel", 256, 256, code, desc, lds)]))

    if which == "k0":
        from gen_k0 import gen_k0
        code, desc, lds = gen_k0()
        open(outp, "w").write(compose([("k0_kernel", 256, 256, code, desc, lds)]))
    if which == "all":
        from gen_k0 import gen_k0
        from gen_k1 import gen_k1
        from gen_k2 import gen_k2
        opts = sys.argv[3:]
        ks = []
        code, desc, lds = gen_k0(); ks.append(("k0_kernel", 256, 256, code, desc, lds))
        code, desc, lds = gen_k1(stamps=("stamps" in opts)); ks.append(("k1_kernel", 256, 512, code, desc, lds))
        code, desc, lds = gen_k2(); ks.append(("k2_kernel", 256, 256, code, desc, lds))
        open(outp, "w").write(compose(ks))

    if which == "v2":
        from gen_k1b import gen_k1
        from gen_k2 import gen_k2
        opts = sys.argv[3:]
        ks = []
        code, desc, lds = gen_k1(stamps=("stamps" in opts)); ks.append(("k1_kernel", 256, 512, code, desc, lds))
        code, desc, lds = gen_k2(); ks.append(("k2_kernel", 256, 256, code, desc, lds))
        open(outp, "w").write(compose(ks))

    if which == "v3":
        from gen_k1c import gen_k1
        from gen_k2 import gen_k2
        opts = sys.argv[3:]
        ks = []
        kw = {}
        for o in opts:
            if o.startswith("xcd="): kw["xcdmap"] = int(o[4:])
            if o.startswith("at="): kw["a_tiles"] = tuple(int(c) for c in o[3:])
            if o.startswith("bt="): kw["b_tiles"] = tuple(int(c) for c in o[3:])
            if o == "nopf": kw["prefetch"] = False
            if o == "norot": kw["rot"] = False
        code, desc, lds = gen_k1(stamps=("stamps" in opts), **kw); ks.append(("k1_kernel", 256, 512, code, desc, lds))
        code, desc, lds = gen_k2(); ks.append(("k2_kernel", 256, 256, code, desc, lds))
        open(outp, "w").write(compose(ks))

    if which == "v4":
        from gen_k1c import gen_k1
        from gen_k2b import gen_k2
        opts = sys.argv[3:]
        ks = []
        kw = {}; kw2 = {}
        for o in opts:
            if o.startswith("xcd="): kw["xcdmap"] = int(o[4:])
            if o.startswith("at="): kw["a_tiles"] = tuple(int(c) for c in o[3:])
            if o.startswith("bt="): kw["b_tiles"] = tuple(int(c) for c in o[3:])
            if o.startswith("nw="): kw2["NW"] = int(o[3:])
            if o.startswith("depth="): kw2["DEPTH"] = int(o[6:])
        nw = kw2.get("NW", 8)
        code, desc, lds = gen_k1(stamps=("stamps" in opts), **kw); ks.append(("k1_kernel", 256, 512, code, desc, lds))
        code, desc, lds = gen_k2(stamps=("stamps" in opts), **kw2); ks.append(("k2_kernel", 256, 64*nw, code, desc, lds))
        open(outp, "w").write(compose(ks))

    if which == "k2b":
        from gen_k2b import gen_k2
        opts = sys.argv[3:]
        kw2 = {}
        for o in opts:
            if o.startswith("nw="): kw2["NW"] = int(o[3:])
            if o.startswith("depth="): kw2["DEPTH"] = int(o[6:])
            if o == "loop": kw2["loop"] = True
        nw = kw2.get("NW", 8)
        code, desc, lds = gen_k2(stamps=True, **kw2)
        open(outp, "w").write(compose([("k2_kernel", 256, 64*nw, code, desc, lds)]))

    if which == "v5":
        from gen_k1d import gen_k1
        from gen_k2b import gen_k2
        opts = sys.argv[3:]
        ks = []
        kw = {}; kw2 = {}
        st = 0
        for o in opts:
            if o.startswith("nw="): kw2["NW"] = int(o[3:])
            if o.startswith("depth="): kw2["DEPTH"] = int(o[6:])
            if o.startswith("stamps"): st = int(o[6:] or 1)
            if o.startswith("xcd="): kw["xcdmap"] = int(o[4:]); kw2["xcdmap"] = int(o[4:])
            if o == "nopf": kw["prefetch"] = False
        nw = kw2.get("NW", 8)
        code, desc, lds = gen_k1(stamps=st, **kw); ks.append(("k1_kernel", 256, 512, code, desc, lds))
        code, desc, lds = gen_k2(stamps=(st > 0), **kw2); ks.append(("k2_kernel", 256, 64*nw, code, desc, lds))
        open(outp, "w").write(compose(ks))
```

```python
from asmlib import *
from layout import *
from gen_k2 import KA, srd, add64, kernel_header, kernel_desc

SLOT = 24576
U0 = 98304
M_STM = 65536
M_STR = 66560
M_CSB = 67072
M_E = 67584
M_PT = 69632
M_TB = 73728
M_CSW = U0
LOG2E = 1.4426950408889634
WS_CSP = WS_END
WS_CSP_BYTES = 16 * 16 * 128 * 4
WS_END2 = WS_CSP + WS_CSP_BYTES
LO32 = "0xffffffff"


def f32(x):
    import struct
    return "0x%08x" % struct.unpack("<I", struct.pack("<f", x))[0]


def gen_k1(name="k1_kernel", stamps=False, a_tiles=(1, 3), b_tiles=(0, 2)):
    p = Prog()
    end = name + "_end"
    stn = {"i": 1}
    def stamp():
        if stamps:
            p("s_memtime s[94:95]")
            p("s_waitcnt lgkmcnt(0)")
            p(f"v_writelane_b32 v115, s94, {stn['i']}")
            stn["i"] += 1
    def bar():
        p("s_" + "barrier")
        stamp()
    p("s_cmp_ge_u32 s2, 256")
    p(f"s_cbranch_scc1 {end}")
    if stamps:
        p("s_memtime s[80:81]")
    p(f"s_load_dwordx2 s[4:5], s[0:1], {KA['x']}")
    p(f"s_load_dwordx4 s[8:11], s[0:1], {KA['bre']}")
    p(f"s_load_dwordx4 s[16:19], s[0:1], {KA['w1']}")
    p(f"s_load_dwordx4 s[20:23], s[0:1], {KA['dbg']}")
    p(f"s_load_dwordx4 s[12:15], s[0:1], {KA['lre']}")
    p(f"s_load_dwordx2 s[6:7], s[0:1], {KA['ldt']}")
    p("v_lshrrev_b32 v1, 6, v0")
    p("s_and_b32 s25, s2, 7")
    p("v_readfirstlane_b32 s24, v1")
    p("v_and_b32 v1, 63, v0")
    p("s_lshr_b32 s26, s2, 3")
    p("s_lshr_b32 s27, s26, 4")
    p("s_lshl_b32 s25, s25, 1")
    p("s_add_u32 s27, s27, s25")
    p("s_and_b32 s28, s26, 15")
    p("s_lshr_b32 s29, s28, 2")
    p("s_mul_i32 s29, s29, 7")
    p("s_and_b32 s30, s28, 3")
    p("s_lshl_b32 s31, s30, 1")
    p("s_add_u32 s29, s29, s31")
    p("v_mov_b32 v115, 0")
    p("v_and_b32 v2, 31, v1")
    p("v_lshrrev_b32 v3, 5, v1")
    p("s_and_b32 s31, s24, 3")
    p("v_bfe_u32 v12, v2, 1, 3")
    p("v_xor_b32 v12, v12, v3")
    p("v_lshlrev_b32 v12, 4, v12")
    p("v_lshl_add_u32 v12, v2, 7, v12")
    p("s_lshl_b32 s52, s31, 12")
    p("s_cmp_ge_u32 s24, 4")
    p(f"s_cbranch_scc1 {name}_B")

    c0 = -2.0 * 0.7978845608028654 * LOG2E
    c1 = c0 * 0.044715

    def ffn_setup(p, WSS, DBGS, B1S):
        p("v_bfe_u32 v13, v1, 2, 2")
        p("v_lshl_add_u32 v14, v3, 3, v13")
        p("v_lshlrev_b32 v14, 7, v14")
        p("v_bfe_u32 v15, v1, 4, 1")
        p("v_lshlrev_b32 v15, 1, v15")
        p("v_bfe_u32 v12, v1, 1, 1")
        p("v_add_u32 v15, v15, v12")
        p("v_lshrrev_b32 v12, 1, v13")
        p("v_lshl_add_u32 v15, v12, 2, v15")
        p("v_lshl_add_u32 v14, v15, 4, v14")
        p("v_and_b32 v12, 1, v1")
        p("v_lshl_add_u32 v6, v12, 3, v14")
        p("v_xor_b32 v7, 64, v6")
        p(f"v_add_u32 v4, {U0}, v6")
        p(f"v_add_u32 v5, {U0}, v7")
        p("v_lshlrev_b32 v9, 4, v1")
        p("s_lshl_b32 s54, s31, 8")
        p(f"s_add_u32 s54, s54, {M_STM}")
        p("v_lshlrev_b32 v12, 3, v2")
        p("v_add_u32 v12, s54, v12")
        p("ds_read_b64 v[110:111], v12")
        p("v_mov_b32 v104, 0")
        p("v_mov_b32 v105, 0")
        p("v_mov_b32 v106, 0")
        p("v_mov_b32 v107, 0")
        p("v_rcp_f32 v108, v111")
        p("s_mov_b32 exec_hi, 0")
        p("v_cvt_pk_bf16_f32 v104, -v110, -v110")
        p("v_lshrrev_b32 v105, 16, v111")
        p("s_mov_b32 exec_hi, -1")
        p("v_mul_f32 v109, v108, v108")
        p("v_mul_f32 v109, v109, v108")
        p(f"v_mul_f32 v109, {f32(c1)}, v109")
        p(f"v_mul_f32 v108, {f32(c0)}, v108")
        p("v_mov_b32 v110, v111")
        p("s_lshl_b32 s60, s27, 1")
        p("s_lshr_b32 s61, s31, 1")
        p("s_add_u32 s60, s60, s61")
        p(f"s_mul_i32 s60, s60, {NSTEP*2048}")
        p("s_and_b32 s61, s31, 1")
        p("s_lshl_b32 s61, s61, 10")
        p("s_add_u32 s60, s60, s61")
        p(f"s_add_u32 s60, s60, {WS_H}")
        p("v_lshlrev_b32 v10, 12, v3")
        p("v_lshl_add_u32 v10, v2, 2, v10")
        p("v_lshlrev_b32 v11, 1, v2")

    def poll(p, lab, DBGS, word_sgpr_off, mask_txt):
        p(f"v_mov_b32 v13, {word_sgpr_off}")
        p("s_mov_b32 s62, 0")
        p.label(lab)
        p(f"buffer_load_dword v12, v13, s[{DBGS}:{DBGS+3}], 0 offen sc0 sc1")
        p("s_waitcnt vmcnt(0)")
        p("v_readfirstlane_b32 s55, v12")
        p(f"s_and_b32 s55, s55, {mask_txt}")
        p(f"s_cmp_eq_u32 s55, {mask_txt}")
        p(f"s_cbranch_scc1 {lab}_done")
        p("s_add_u32 s62, s62, 1")
        p("s_cmp_gt_u32 s62, 100000")
        p(f"s_cbranch_scc1 {lab}_done")
        p("s_sleep 1")
        p(f"s_branch {lab}")
        p.label(lab + "_done")

    def ffn_tile(p, ti, WSS, B1S):
        acc = 48
        NB = 6
        areg = 4 + ti
        p("s_lshl_b32 s61, s28, 13")
        p(f"s_add_u32 s61, s61, {WS_CSP + ti*128}")
        for j in range(8):
            p(f"buffer_load_dword v{64+j}, v10, s[{WSS}:{WSS+3}], s61 offen offset:{j*512} sc0 sc1")
        p("s_lshl_b32 s61, s29, 7")
        p(f"s_add_u32 s61, s61, {ti*64}")
        p(f"buffer_load_ushort v72, v11, s[{B1S}:{B1S+3}], s61 offen")

        def rd(s):
            b = 80 + (s % NB) * 4
            p(f"ds_read_b64_tr_b16 v[{b}:{b+1}], v{areg} offset:{s*2048}")
            p(f"ds_read_b64_tr_b16 v[{b+2}:{b+3}], v{areg} offset:{s*2048+512}")
        for s in range(NB - 1):
            rd(s)
        for s in range(32):
            if s + NB - 1 < 32:
                rd(s + NB - 1)
            b = 80 + (s % NB) * 4
            c = "0" if s == 0 else f"v[{acc}:{acc+15}]"
            p(f"v_mfma_f32_32x32x16_bf16 v[{acc}:{acc+15}], v[{b}:{b+3}], a[{4*s}:{4*s+3}], {c}")
        for j in range(1, 8):
            p(f"v_add_f32 v64, v64, v{64+j}")
        p("v_mov_b32 v65, v64")
        p("v_permlane32_swap_b32 v64, v65")
        p("v_add_f32 v64, v64, v65")
        p("v_cvt_pk_bf16_f32 v65, v64, v64")
        p("v_and_b32 v66, 0xffff0000, v65")
        p("v_sub_f32 v66, v64, v66")
        p("v_mov_b32 v76, 0")
        p("v_mov_b32 v77, 0")
        p("v_mov_b32 v78, 0")
        p("v_mov_b32 v79, 0")
        p("s_mov_b32 exec_hi, 0")
        p("v_cvt_pk_bf16_f32 v76, v64, v66")
        p("v_mov_b32 v77, v72")
        p("s_mov_b32 exec_hi, -1")
        p(f"v_mfma_f32_32x32x16_bf16 v[{acc}:{acc+15}], v[76:79], v[104:107], v[{acc}:{acc+15}]")
        for j in range(16):
            x = acc + j
            t = 64 + j
            p(f"v_mul_f32 v{t}, v{x}, v{x}")
            p(f"v_fma_f32 v{t}, v{t}, v109, v108")
            p(f"v_mul_f32 v{t}, v{t}, v{x}")
            p(f"v_exp_f32 v{t}, v{t}")
            p(f"v_fma_f32 v{t}, v{t}, v110, v110")
            p(f"v_rcp_f32 v{t}, v{t}")
            p(f"v_mul_f32 v{t}, v{t}, v{x}")
        for u in range(2):
            for q in range(4):
                p(f"v_cvt_pk_bf16_f32 v{80+4*u+q}, v{64+8*u+2*q}, v{64+8*u+2*q+1}")
            p("s_lshl_b32 s61, s29, 2")
            p(f"s_add_u32 s61, s61, {64+2*ti+u}")
            p("s_lshl_b32 s61, s61, 11")
            p("s_add_u32 s61, s61, s60")
            p(f"buffer_store_dwordx4 v[{80+4*u}:{83+4*u}], v9, s[{WSS}:{WSS+3}], s61 offen")

    for u in range(4):
        p(f"v_xor_b32 v{8+u}, {32*u}, v12")
        p(f"v_add_u32 v{4+u}, s52, v{8+u}")
        p(f"v_add_u32 v{8+u}, 16384, v{8+u}")
    p("s_waitcnt lgkmcnt(0)")
    srd(p, 32, 22, 23, WS_END2)
    srd(p, 36, 20, 21, 256)
    srd(p, 40, 12, 13, 1024)
    srd(p, 44, 14, 15, 1024)
    srd(p, 48, 6, 7, 1024)
    srd(p, 64, 18, 19, 3584)
    p("s_lshl_b32 s53, s28, 6")
    p("v_lshlrev_b32 v13, 1, v2")
    p("buffer_load_ushort v112, v13, s[40:43], s53 offen")
    p("buffer_load_ushort v113, v13, s[44:47], s53 offen")
    p("buffer_load_ushort v114, v13, s[48:51], s53 offen")
    A_RE, A_IM, A16_RE, A16_IM, A128_RE, A128_IM, AS_RE, AS_IM, C_RE, C_IM = 116, 117, 118, 119, 120, 121, 122, 123, 124, 125
    SEG = 126

    def ssm_params():
        p("v_lshlrev_b32 v112, 16, v112")
        p("v_lshlrev_b32 v113, 16, v113")
        p("v_lshlrev_b32 v114, 16, v114")
        p(f"v_mul_f32 v114, {f32(LOG2E)}, v114")
        p("v_exp_f32 v114, v114")
        p("v_cvt_pk_bf16_f32 v114, v114, v114")
        p("v_and_b32 v114, 0xffff0000, v114")
        p("v_mul_f32 v14, v114, v112")
        p("v_mul_f32 v15, v114, v113")
        p(f"v_mul_f32 v14, {f32(LOG2E)}, v14")
        p(f"v_mul_f32 v15, {f32(0.15915494309189535)}, v15")

        def cpow(n_txt, dre, dim):
            p(f"v_mul_f32 v12, {n_txt}, v14")
            p(f"v_mul_f32 v13, {n_txt}, v15")
            p("v_exp_f32 v12, v12")
            p("v_fract_f32 v13, v13")
            p(f"v_cos_f32 v{dre}, v13")
            p(f"v_sin_f32 v{dim}, v13")
            p(f"v_mul_f32 v{dre}, v{dre}, v12")
            p(f"v_mul_f32 v{dim}, v{dim}, v12")
        cpow("1.0", A_RE, A_IM)
        cpow(f32(16.0), A16_RE, A16_IM)
        cpow(f32(128.0), A128_RE, A128_IM)
        p("s_lshl_b32 s54, s31, 1")
        p(f"v_add_u32 v{SEG}, s54, v3")
        p(f"v_cvt_f32_u32 v127, v{SEG}")
        p(f"v_mul_f32 v127, {f32(16.0)}, v127")
        cpow("v127", AS_RE, AS_IM)
        p(f"v_add_f32 v12, -1.0, v{A_RE}")
        p("v_mul_f32 v13, v112, v112")
        p("v_fmac_f32 v13, v113, v113")
        p("v_rcp_f32 v13, v13")
        p("v_add_f32 v13, v13, v13")
        p(f"v_mul_f32 v{C_RE}, v12, v112")
        p(f"v_fmac_f32 v{C_RE}, v{A_IM}, v113")
        p(f"v_mul_f32 v{C_IM}, v{A_IM}, v112")
        p(f"v_fma_f32 v{C_IM}, -v12, v113, v{C_IM}")
        p(f"v_mul_f32 v{C_RE}, v{C_RE}, v13")
        p(f"v_mul_f32 v{C_IM}, v{C_IM}, v13")

    def a_reads(s):
        bb = 48 + 32 * (s & 1)
        for u in range(4):
            p(f"ds_read_b128 a[{16*s+4*u}:{16*s+4*u+3}], v{4+u}")
            p(f"ds_read_b128 v[{bb+8*u}:{bb+8*u+3}], v{8+u}")
            p(f"ds_read_b128 v[{bb+8*u+4}:{bb+8*u+7}], v{8+u} offset:4096")
        if s < 7:
            d = SLOT if (s % 4) != 3 else -3 * SLOT
            for u in range(8):
                if d > 0:
                    p(f"v_add_u32 v{4+u}, {d}, v{4+u}")
                else:
                    p(f"v_subrev_u32 v{4+u}, {-d}, v{4+u}")

    def a_mfma(s):
        bb = 48 + 32 * (s & 1)
        for u in range(4):
            c0_ = "0" if (s == 0 and u == 0) else "v[16:31]"
            c1_ = "0" if (s == 0 and u == 0) else "v[32:47]"
            p(f"v_mfma_f32_32x32x16_bf16 v[16:31], a[{16*s+4*u}:{16*s+4*u+3}], v[{bb+8*u}:{bb+8*u+3}], {c0_}")
            p(f"v_mfma_f32_32x32x16_bf16 v[32:47], a[{16*s+4*u}:{16*s+4*u+3}], v[{bb+8*u+4}:{bb+8*u+7}], {c1_}")

    for s in range(8):
        bar()
        a_reads(s)
        if s >= 1:
            a_mfma(s - 1)
        if s == 2:
            ssm_params()
        if s == 7:
            a_mfma(7)
        p("s_waitcnt lgkmcnt(0)")
    stamp()
    bar()
    p("s_lshl_b32 s54, s31, 8")
    p(f"s_add_u32 s54, s54, {M_STM}")
    p("v_lshlrev_b32 v12, 3, v2")
    p("v_add_u32 v12, s54, v12")
    p("ds_read_b32 v48, v12")
    p("v_lshlrev_b32 v13, 2, v2")
    p(f"v_add_u32 v13, {M_CSB}, v13")
    p("ds_read_b32 v49, v13")
    p("ds_read_b32 v50, v13 offset:128")
    p("s_lshl_b32 s54, s31, 7")
    p(f"s_add_u32 s54, s54, {M_STR}")
    p("v_lshlrev_b32 v14, 6, v3")
    p("v_add_u32 v14, s54, v14")
    for i in range(4):
        p(f"ds_read_b128 v[{80+4*i}:{83+4*i}], v14 offset:{16*i}")
    for i in range(52, 64):
        p(f"v_mov_b32 v{i}, 0")
    p("v_cvt_pk_bf16_f32 v51, v49, v50")
    p("v_lshlrev_b32 v64, 16, v51")
    p("v_and_b32 v65, 0xffff0000, v51")
    p("v_sub_f32 v64, v49, v64")
    p("v_sub_f32 v65, v50, v65")
    p("s_mov_b32 exec_hi, 0")
    p("v_cvt_pk_bf16_f32 v52, -v48, -v48")
    p("v_cvt_pk_bf16_f32 v56, v49, v64")
    p("v_cvt_pk_bf16_f32 v60, v50, v65")
    p("s_mov_b32 exec_hi, -1")
    p("v_mfma_f32_32x32x16_bf16 v[16:31], v[52:55], v[56:59], v[16:31]")
    p("v_mfma_f32_32x32x16_bf16 v[32:47], v[52:55], v[60:63], v[32:47]")
    for r in range(16):
        p(f"v_mul_f32 v{16+r}, v{16+r}, v{80+r}")
        p(f"v_mul_f32 v{32+r}, v{32+r}, v{80+r}")

    def cstep(dre, dim, sre, sim, ar, ai, inre, inim):
        p(f"v_fma_f32 v{dre}, v{ar}, v{sre}, v{inre}")
        p(f"v_fma_f32 v{dim}, v{ar}, v{sim}, v{inim}")
        p(f"v_fma_f32 v{dre}, -v{ai}, v{sim}, v{dre}")
        p(f"v_fma_f32 v{dim}, v{ai}, v{sre}, v{dim}")
    cur = (16, 32)
    for r in range(1, 16):
        nxt = (96, 97) if r & 1 else (98, 99)
        cstep(nxt[0], nxt[1], cur[0], cur[1], A_RE, A_IM, 16 + r, 32 + r)
        cur = nxt
    assert cur == (96, 97)
    p(f"v_lshlrev_b32 v13, 8, v{SEG}")
    p("v_lshl_add_u32 v13, v2, 3, v13")
    p(f"v_add_u32 v13, {M_E}, v13")
    p("ds_write_b64 v13, v[96:97]")
    p("s_waitcnt lgkmcnt(0)")
    bar()
    p("v_lshlrev_b32 v13, 3, v2")
    p(f"v_add_u32 v13, {M_E}, v13")
    for s in range(8):
        p(f"ds_read_b64 v[{48+2*s}:{49+2*s}], v13 offset:{256*s}")
    p("v_mov_b32 v112, 0")
    p("v_mov_b32 v113, 0")
    cur = (48, 49)
    for s in range(1, 8):
        p(f"v_cmp_eq_u32 vcc, {s}, v{SEG}")
        p(f"v_cndmask_b32 v112, v112, v{cur[0]}, vcc")
        p(f"v_cndmask_b32 v113, v113, v{cur[1]}, vcc")
        nxt = (96, 97) if s & 1 else (98, 99)
        cstep(nxt[0], nxt[1], cur[0], cur[1], A16_RE, A16_IM, 48 + 2 * s, 49 + 2 * s)
        cur = nxt
    assert cur == (96, 97)
    skip = name + "_nopub"
    p("s_cmp_lg_u32 s24, 0")
    p(f"s_cbranch_scc1 {skip}")
    p("s_lshl_b32 s54, s27, 4")
    p("s_add_u32 s54, s54, s28")
    p("s_lshl_b32 s54, s54, 8")
    p(f"s_add_u32 s54, s54, {WS_E}")
    p("v_lshlrev_b32 v13, 3, v2")
    p("s_mov_b32 exec_hi, 0")
    p("buffer_store_dwordx2 v[96:97], v13, s[32:35], s54 offen sc0 sc1")
    p("s_waitcnt vmcnt(0)")
    p("s_mov_b64 exec, 1")
    p("s_lshl_b32 s55, 1, s27")
    p("v_mov_b32 v98, s55")
    p("s_lshl_b32 s55, s28, 2")
    p("v_mov_b32 v99, s55")
    p("buffer_atomic_or v98, v99, s[36:39], 0 offen sc1")
    p("s_mov_b64 exec, -1")
    p.label(skip)
    stamp()
    ffn_setup(p, 32, 36, 64)
    p("s_lshl_b32 s56, s28, 2")
    p("s_add_u32 s56, s56, 64")
    p("s_mov_b32 s57, 0xffff")
    poll(p, name + "_pollcA", 36, "s56", "s57")
    lightA = name + "_lightA"
    t_first = [t for t in a_tiles if t < 2]
    t_second = [t for t in a_tiles if t >= 2]
    for t in t_first:
        ffn_tile(p, t, 32, 64)
    p("s_cmp_eq_u32 s30, 3")
    p(f"s_cbranch_scc1 {lightA}")
    bar()
    for t in t_second:
        ffn_tile(p, t, 32, 64)
    p.label(lightA)
    stamp()
    p("s_lshl_b32 s54, 1, s27")
    p("s_sub_u32 s54, s54, 1")
    p("s_lshl_b32 s56, s28, 2")
    poll(p, name + "_pollE", 36, "s56", "s54")
    stamp()
    p("s_lshl_b32 s54, s28, 8")
    p(f"s_add_u32 s54, s54, {WS_E}")
    p("v_lshlrev_b32 v13, 3, v2")
    for j in range(15):
        p(f"buffer_load_dwordx2 v[{48+2*j}:{49+2*j}], v13, s[32:35], s54 offen sc0 sc1")
        p("s_add_u32 s54, s54, 4096")
    p("v_mov_b32 v96, 0")
    p("v_mov_b32 v97, 0")
    p("s_waitcnt vmcnt(0)")
    hdone = name + "_hdone"
    for j in range(15):
        p(f"s_cmp_le_u32 s27, {j}")
        p(f"s_cbranch_scc1 {hdone}")
        cstep(98, 99, 96, 97, A128_RE, A128_IM, 48 + 2 * j, 49 + 2 * j)
        p("v_mov_b32 v96, v98")
        p("v_mov_b32 v97, v99")
    p.label(hdone)
    cstep(98, 99, 96, 97, AS_RE, AS_IM, 112, 113)
    p("s_lshl_b32 s54, s31, 12")
    p(f"s_add_u32 s54, s54, {M_TB}")
    p("v_lshrrev_b32 v12, 2, v2")
    p("v_lshlrev_b32 v13, 1, v3")
    p("v_xor_b32 v12, v12, v13")
    p("v_and_b32 v13, 3, v2")
    p("v_lshlrev_b32 v13, 2, v13")
    p("v_lshl_add_u32 v13, v3, 9, v13")
    p("v_add_u32 v13, s54, v13")
    K0S = [0, 1, 4, 5]
    for i, k0 in enumerate(K0S):
        p(f"v_xor_b32 v14, {k0}, v12")
        p(f"v_lshl_add_u32 v{4+i}, v14, 4, v13")
    cur = (98, 99)
    for r in range(16):
        a, b = r >> 2, r & 3
        k0 = 4 * (a & 1) + (b >> 1)
        nxt = (96, 97) if (r & 1) == 0 else (98, 99)
        cstep(nxt[0], nxt[1], cur[0], cur[1], A_RE, A_IM, 16 + r, 32 + r)
        cur = nxt
        p(f"v_mul_f32 v84, v{C_RE}, v{cur[0]}")
        p(f"v_mul_f32 v85, v{C_RE}, v{cur[1]}")
        p(f"v_fma_f32 v84, -v{C_IM}, v{cur[1]}, v84")
        p(f"v_fma_f32 v85, v{C_IM}, v{cur[0]}, v85")
        p(f"v_cvt_pk_bf16_f32 v{48+r}, v84, -v85")
        p(f"ds_write_b32 v{4+K0S.index(k0)}, v{48+r} offset:{(8*a+b)*128}")
    p("v_bfe_u32 v12, v2, 1, 3")
    p("v_xor_b32 v12, v12, v3")
    p("v_lshlrev_b32 v12, 4, v12")
    p("v_lshl_add_u32 v12, v2, 7, v12")
    p("v_add_u32 v12, s54, v12")
    p("s_waitcnt lgkmcnt(0)")
    for u in range(4):
        p(f"v_xor_b32 v13, {32*u}, v12")
        p(f"ds_read_b128 v[{64+4*u}:{67+4*u}], v13")
    for u in range(4):
        p("s_lshl_b32 s61, s28, 2")
        p(f"s_add_u32 s61, s61, {u}")
        p("s_lshl_b32 s61, s61, 11")
        p("s_add_u32 s61, s61, s60")
        p(f"buffer_store_dwordx4 v[{64+4*u}:{67+4*u}], v9, s[32:35], s61 offen")

    def stamp_out(regs, wsb):
        p("s_waitcnt vmcnt(0)")
        stamp()
        p("v_writelane_b32 v115, s80, 0")
        p("s_lshl_b32 s19, s2, 3")
        p("s_add_u32 s19, s19, s92")
        p("s_lshl_b32 s19, s19, 8")
        p("s_add_u32 s19, s19, 0x4000000")
        add64(p, 72, 73, 22, 23, "s19")
        srd(p, 76, 72, 73, 256)
        p("v_lshlrev_b32 v72, 2, v1")
        p("buffer_store_dword v115, v72, s[76:79], 0 offen")
    if stamps:
        p("s_mov_b32 s92, s24")
        stamp_out([80, 82, 84, 86, 88, 90, 90, 90], 32)
    p("s_endpgm")

    p.label(name + "_B")
    stn["i"] = 1
    if stamps:
        p("s_mov_b32 s92, s24")
    p("s_sub_u32 s24, s24, 4")
    srd(p, 32, 4, 5, 2048 * 1024)
    p("s_cmp_ge_u32 s24, 2")
    p("s_cselect_b32 s36, s10, s8")
    p("s_cselect_b32 s37, s11, s9")
    p("s_and_b32 s37, s37, 0xffff")
    p("s_mov_b32 s38, 0x80000")
    p("s_mov_b32 s39, 0x00020000")
    p("v_and_b32 v13, 7, v1")
    p("v_lshrrev_b32 v14, 4, v1")
    p("v_xor_b32 v13, v13, v14")
    p("v_lshlrev_b32 v13, 4, v13")
    p("v_lshlrev_b32 v14, 4, v3")
    p("v_bfe_u32 v15, v1, 3, 2")
    p("v_add_u32 v14, v14, v15")
    p("s_lshl_b32 s53, s24, 5")
    p("v_add_u32 v14, s53, v14")
    p("v_lshl_add_u32 v16, v14, 10, v13")
    p("v_xor_b32 v17, 64, v16")
    p("v_lshrrev_b32 v14, 3, v1")
    p("v_lshl_add_u32 v18, v14, 10, v13")
    p("v_xor_b32 v19, 64, v18")
    p("s_lshl_b32 s54, s27, 17")
    p("s_lshl_b32 s55, s28, 5")
    p("s_and_b32 s56, s24, 1")
    p("s_lshl_b32 s56, s56, 4")
    p("s_add_u32 s55, s55, s56")
    p("s_lshl_b32 s55, s55, 10")
    p("s_lshl_b32 s57, s24, 12")
    p("s_lshl_b32 s58, s24, 11")

    def dma(m0_base, m0_add, voff, srdn, soff_base, soff_add):
        p(f"s_add_u32 m0, {m0_base}, {m0_add}")
        p(f"s_add_u32 s62, {soff_base}, {soff_add}")
        p(f"buffer_load_dwordx4 v{voff}, s[{srdn}:{srdn+3}], s62 offen lds")

    def stage(s):
        base = (s % 4) * SLOT
        for i in range(4):
            dma("s57", base + i * 1024, 16 + (i & 1), 32, "s54", s * 128 + i * 4096)
        for i in range(2):
            dma("s58", base + 16384 + i * 1024, 18 + i, 36, "s55", s * 128 + i * 8192)

    stage(0)
    srd(p, 40, 16, 17, 512 * 3584)
    p("s_movk_i32 s53, 3584")
    p("v_lshrrev_b32 v13, 4, v1")
    p("v_mul_lo_u32 v13, v13, s53")
    p("v_and_b32 v15, 15, v1")
    p("v_lshl_add_u32 v13, v15, 4, v13")
    p("s_lshl_b32 s59, s27, 5")
    p("s_lshl_b32 s60, s24, 3")
    p("s_add_u32 s59, s59, s60")
    p("s_mul_i32 s59, s59, 3584")
    p("s_lshl_b32 s60, s29, 7")
    p("s_add_u32 s59, s59, s60")
    p("buffer_load_dwordx4 v[72:75], v13, s[40:43], s59 offen")
    p(f"s_add_u32 s59, s59, {4*3584}")
    p("buffer_load_dwordx4 v[76:79], v13, s[40:43], s59 offen")
    for s in range(1, 4):
        stage(s)
    srd(p, 44, 22, 23, WS_END2)
    srd(p, 48, 18, 19, 3584)
    srd(p, 64, 20, 21, 256)
    p("v_mul_lo_u32 v20, v14, s53")
    p("v_bfe_u32 v15, v1, 4, 1")
    p("v_lshlrev_b32 v15, 2, v15")
    p("v_and_b32 v13, 7, v1")
    p("v_xor_b32 v15, v15, v13")
    p("v_lshl_add_u32 v20, v15, 4, v20")
    for u in range(4):
        p(f"v_xor_b32 v{4+u}, {32*u}, v12")
        p(f"v_add_u32 v{4+u}, s52, v{4+u}")
    p("v_and_b32 v13, 15, v1")
    p("v_lshrrev_b32 v14, 4, v1")
    p("v_bfe_u32 v15, v1, 1, 3")
    p("v_xor_b32 v14, v14, v15")
    p("v_lshlrev_b32 v14, 4, v14")
    p("v_lshl_add_u32 v14, v13, 7, v14")
    p("v_add_u32 v8, s52, v14")
    p("v_xor_b32 v9, 64, v8")
    p("s_lshl_b32 s59, s24, 11")
    p("s_add_u32 s59, s59, 16384")
    p("v_add_u32 v10, s59, v14")
    p("v_xor_b32 v11, 64, v10")
    p("v_mov_b32 v64, 0x3f803f80")
    p("v_mov_b32 v65, 0x3f803f80")
    p("v_mov_b32 v66, 0x3f803f80")
    p("v_mov_b32 v67, 0x3f803f80")

    def b_reads(s):
        for u in range(4):
            p(f"ds_read_b128 a[{16*s+4*u}:{16*s+4*u+3}], v{4+u}")
        p("ds_read_b128 v[44:47], v8")
        p("ds_read_b128 v[48:51], v9")
        p("ds_read_b128 v[52:55], v8 offset:2048")
        p("ds_read_b128 v[56:59], v9 offset:2048")
        p("ds_read_b128 v[60:63], v10")
        p("ds_read_b128 v[68:71], v11")
        if s < 7:
            d = SLOT if (s % 4) != 3 else -3 * SLOT
            for u in range(8):
                if d > 0:
                    p(f"v_add_u32 v{4+u}, {d}, v{4+u}")
                else:
                    p(f"v_subrev_u32 v{4+u}, {-d}, v{4+u}")

    def b_mfma(s):
        z = (s == 0)
        M = "v_mfma_f32_16x16x32_bf16"
        p(f"{M} v[24:27], v[44:47], v[44:47], {'0' if z else 'v[24:27]'}")
        p(f"{M} v[28:31], v[52:55], v[52:55], {'0' if z else 'v[28:31]'}")
        p(f"{M} v[32:35], v[44:47], v[64:67], {'0' if z else 'v[32:35]'}")
        p(f"{M} v[36:39], v[52:55], v[64:67], {'0' if z else 'v[36:39]'}")
        p(f"{M} v[40:43], v[60:63], v[64:67], {'0' if z else 'v[40:43]'}")
        p(f"{M} v[24:27], v[48:51], v[48:51], v[24:27]")
        p(f"{M} v[28:31], v[56:59], v[56:59], v[28:31]")
        p(f"{M} v[32:35], v[48:51], v[64:67], v[32:35]")
        p(f"{M} v[36:39], v[56:59], v[64:67], v[36:39]")
        p(f"{M} v[40:43], v[68:71], v[64:67], v[40:43]")

    def unit(un, ldsbase):
        p("s_lshl_b32 s63, s24, 14")
        p(f"s_add_u32 s63, s63, {ldsbase}")
        p(f"s_mul_i32 s68, s24, {16*8*3584}")
        p("s_lshl_b32 s69, s29, 7")
        p("s_add_u32 s68, s68, s69")
        for i in range(16):
            dma("s63", i * 1024, 20, 40, "s68", i * 8 * 3584 + un * 128)

    p("s_waitcnt vmcnt(20)"); bar()
    b_reads(0); b_mfma(0)
    p("s_waitcnt vmcnt(12) lgkmcnt(0)"); bar()
    stage(4)
    b_reads(1); b_mfma(1)
    for i in range(4):
        p(f"v_lshlrev_b32 v80, 16, v{72+i}")
        p(f"v_and_b32 v81, 0xffff0000, v{72+i}")
        p(f"v_lshlrev_b32 v82, 16, v{76+i}")
        p(f"v_and_b32 v83, 0xffff0000, v{76+i}")
        p(f"v_add_f32 v{84+2*i}, v80, v82")
        p(f"v_add_f32 v{85+2*i}, v81, v83")
    p("v_lshrrev_b32 v13, 4, v1")
    p("v_lshlrev_b32 v13, 9, v13")
    p("v_and_b32 v14, 15, v1")
    p("v_lshl_add_u32 v13, v14, 5, v13")
    p("s_lshl_b32 s59, s24, 11")
    p(f"s_add_u32 s59, s59, {M_CSW}")
    p("v_add_u32 v13, s59, v13")
    p("ds_write_b128 v13, v[84:87]")
    p("ds_write_b128 v13, v[88:91] offset:16")
    p("s_waitcnt vmcnt(12) lgkmcnt(0)"); bar()
    stage(5)
    b_reads(2); b_mfma(2)
    p("s_lshl_b32 s59, s24, 7")
    p(f"s_add_u32 s59, s59, {M_CSW}")
    p("v_lshlrev_b32 v13, 12, v3")
    p("v_lshl_add_u32 v13, v2, 2, v13")
    p("v_add_u32 v13, s59, v13")
    for j in range(8):
        p(f"ds_read_b32 v{80+j}, v13 offset:{j*512}")
    for j in range(1, 8):
        p(f"v_add_f32 v80, v80, v{80+j}")
    p("v_mov_b32 v81, v80")
    p("v_permlane32_swap_b32 v80, v81")
    p("v_add_f32 v80, v80, v81")
    p("s_lshl_b32 s59, s28, 4")
    p("s_add_u32 s59, s59, s27")
    p("s_lshl_b32 s59, s59, 9")
    p("s_lshl_b32 s60, s24, 7")
    p("s_add_u32 s59, s59, s60")
    p(f"s_add_u32 s59, s59, {WS_CSP}")
    p("v_lshlrev_b32 v13, 2, v2")
    p("s_mov_b32 exec_hi, 0")
    p("buffer_store_dword v80, v13, s[44:47], s59 offen sc0 sc1")
    p("s_mov_b32 exec_hi, -1")
    p("s_waitcnt vmcnt(13) lgkmcnt(0)"); bar()
    stage(6)
    b_reads(3); b_mfma(3)
    p("s_waitcnt vmcnt(13) lgkmcnt(0)"); bar()
    stage(7)
    unit(0, U0)
    b_reads(4); b_mfma(4)
    p("s_waitcnt vmcnt(28) lgkmcnt(0)"); bar()
    p("s_cmp_lg_u32 s24, 0")
    p(f"s_cbranch_scc1 {name}_nocsf")
    p("s_mov_b64 exec, 1")
    p("s_lshl_b32 s59, 1, s27")
    p("v_mov_b32 v80, s59")
    p("s_lshl_b32 s59, s28, 2")
    p("s_add_u32 s59, s59, 64")
    p("v_mov_b32 v81, s59")
    p("buffer_atomic_or v80, v81, s[64:67], 0 offen sc1")
    p("s_mov_b64 exec, -1")
    p.label(name + "_nocsf")
    b_reads(5); b_mfma(5)
    p("s_waitcnt vmcnt(22) lgkmcnt(0)"); bar()
    b_reads(6); b_mfma(6)
    p("s_waitcnt vmcnt(16) lgkmcnt(0)"); bar()
    b_reads(7); b_mfma(7)
    p("v_and_b32 v13, 3, v1")
    for (base, dst) in ((24, 80), (28, 81), (32, 82), (36, 83)):
        p(f"v_mov_b32 v{dst}, v{base}")
        for i in range(1, 4):
            p(f"v_cmp_eq_u32 vcc, {i}, v13")
            p(f"v_cndmask_b32 v{dst}, v{dst}, v{base+i}, vcc")
    for rt in range(2):
        q, sm = 80 + rt, 82 + rt
        p(f"v_mul_f32 v{sm}, 0x3b000000, v{sm}")
        p(f"v_mul_f32 v{q}, 0x3b000000, v{q}")
        p(f"v_fma_f32 v{q}, -v{sm}, v{sm}, v{q}")
        p(f"v_max_f32 v{q}, 0, v{q}")
        p(f"v_cvt_pk_bf16_f32 v{sm}, v{sm}, v{q}")
        p(f"v_and_b32 v{q}, 0xffff0000, v{sm}")
        p(f"v_lshlrev_b32 v{sm}, 16, v{sm}")
        p(f"v_add_f32 v{q}, 0x3727c5ac, v{q}")
        p(f"v_cvt_pk_bf16_f32 v{q}, v{q}, v{q}")
        p(f"v_and_b32 v{q}, 0xffff0000, v{q}")
        p(f"v_sqrt_f32 v{q}, v{q}")
        p(f"v_cvt_pk_bf16_f32 v{q}, v{q}, v{q}")
        p(f"v_and_b32 v{q}, 0xffff0000, v{q}")
        p(f"v_rcp_f32 v{84+rt}, v{q}")
    p("v_lshrrev_b32 v13, 4, v1")
    p("v_bfe_u32 v14, v1, 2, 2")
    p("v_cmp_eq_u32 vcc, v13, v14")
    p("s_and_saveexec_b64 s[70:71], vcc")
    p("v_and_b32 v13, 15, v1")
    p("s_lshl_b32 s59, s24, 8")
    p(f"s_add_u32 s59, s59, {M_STM}")
    p("v_lshlrev_b32 v14, 3, v13")
    p("v_add_u32 v14, s59, v14")
    p("v_mov_b32 v86, v82"); p("v_mov_b32 v87, v80")
    p("v_mov_b32 v88, v83"); p("v_mov_b32 v89, v81")
    p("ds_write_b64 v14, v[86:87]")
    p("ds_write_b64 v14, v[88:89] offset:128")
    p("v_bfe_u32 v14, v13, 2, 1")
    p("v_lshlrev_b32 v14, 4, v14")
    p("v_lshrrev_b32 v15, 3, v13")
    p("v_lshl_add_u32 v14, v15, 2, v14")
    p("v_and_b32 v15, 3, v13")
    p("v_add_u32 v14, v14, v15")
    p("s_lshl_b32 s59, s24, 7")
    p(f"s_add_u32 s59, s59, {M_STR}")
    p("v_lshlrev_b32 v15, 2, v14")
    p("v_add_u32 v15, s59, v15")
    p("ds_write_b32 v15, v84")
    p("ds_write_b32 v15, v85 offset:32")
    p("s_cmp_lg_u32 s28, 0")
    p(f"s_cbranch_scc1 {name}_nogst")
    p("v_mov_b32 v87, v84")
    p("v_mov_b32 v89, v85")
    p("s_lshl_b32 s59, s27, 10")
    p("s_lshl_b32 s60, s24, 8")
    p("s_add_u32 s59, s59, s60")
    p(f"s_add_u32 s59, s59, {WS_STATS}")
    p("v_lshlrev_b32 v15, 3, v14")
    p("buffer_store_dwordx2 v[86:87], v15, s[44:47], s59 offen")
    p("buffer_store_dwordx2 v[88:89], v15, s[44:47], s59 offen offset:64")
    p.label(name + "_nogst")
    p("s_mov_b64 exec, s[70:71]")
    p("v_and_b32 v13, 15, v1")
    p("v_cmp_eq_u32 vcc, 0, v13")
    p("s_and_saveexec_b64 s[70:71], vcc")
    p("v_and_b32 v13, 48, v1")
    p("s_lshl_b32 s59, s24, 6")
    p(f"s_add_u32 s59, s59, {M_CSB}")
    p("v_add_u32 v13, s59, v13")
    p("ds_write_b128 v13, v[40:43]")
    p("s_mov_b64 exec, s[70:71]")
    p("s_waitcnt lgkmcnt(0)")
    stamp()
    bar()
    lightB = name + "_lightB"
    p("s_cmp_eq_u32 s30, 3")
    p(f"s_cbranch_scc1 {lightB}")
    unit(1, 0)
    p("s_waitcnt vmcnt(16)"); bar()
    stamp()
    ffn_setup(p, 44, 64, 48)
    p("s_lshl_b32 s56, s28, 2")
    p("s_add_u32 s56, s56, 64")
    p("s_mov_b32 s57, 0xffff")
    poll(p, name + "_pollcB", 64, "s56", "s57")
    for t in [t for t in b_tiles if t < 2]:
        ffn_tile(p, t, 44, 48)
    bar()
    stamp()
    for t in [t for t in b_tiles if t >= 2]:
        ffn_tile(p, t, 44, 48)
    if stamps:
        stamp()
        stamp_out([80, 82, 84, 86, 88, 90, 90, 90], 44)
    p("s_endpgm")
    p.label(lightB)
    stn["i"] = 10
    p("s_waitcnt vmcnt(0)"); bar()
    stamp()
    ffn_setup(p, 44, 64, 48)
    p("s_lshl_b32 s56, s28, 2")
    p("s_add_u32 s56, s56, 64")
    p("s_mov_b32 s57, 0xffff")
    poll(p, name + "_pollcL", 64, "s56", "s57")
    for t in [t for t in b_tiles if t < 2]:
        ffn_tile(p, t, 44, 48)
    stamp()
    p(f"s_load_dwordx4 s[4:7], s[0:1], {KA['cre']}")
    p(f"s_load_dwordx2 s[8:9], s[0:1], {KA['w2']}")
    p("s_lshl_b32 s70, s27, 2")
    p("s_lshr_b32 s71, s28, 2")
    p("s_add_u32 s70, s70, s71")
    p("s_waitcnt lgkmcnt(0)")
    srd(p, 32, 4, 5, 512 * 1024)
    srd(p, 36, 6, 7, 512 * 1024)
    srd(p, 40, 8, 9, 1792 * 1024)
    p("v_lshrrev_b32 v13, 3, v1")
    p("v_bfe_u32 v14, v1, 4, 1")
    p("v_lshlrev_b32 v14, 2, v14")
    p("v_and_b32 v15, 7, v1")
    p("v_xor_b32 v14, v14, v15")
    p("v_lshlrev_b32 v14, 4, v14")
    p("v_lshl_add_u32 v16, v13, 10, v14")
    p("v_bfe_u32 v13, v1, 2, 2")
    p("v_lshl_add_u32 v14, v3, 2, v13")
    p("v_lshlrev_b32 v14, 7, v14")
    p("v_bfe_u32 v15, v1, 4, 1")
    p("v_lshlrev_b32 v15, 1, v15")
    p("v_bfe_u32 v12, v1, 1, 1")
    p("v_add_u32 v15, v15, v12")
    p("v_lshrrev_b32 v12, 1, v13")
    p("v_lshl_add_u32 v15, v12, 2, v15")
    p("v_lshl_add_u32 v14, v15, 4, v14")
    p("v_and_b32 v12, 1, v1")
    p("v_lshl_add_u32 v17, v12, 3, v14")
    p("s_lshl_b32 s71, s24, 13")
    p("v_add_u32 v17, s71, v17")
    p("v_xor_b32 v18, 64, v17")
    for i in range(4):
        sk = f"{name}_slab{i}"
        p(f"s_add_u32 s72, s24, {4*i}")
        p("s_cmp_ge_u32 s72, 14")
        p(f"s_cbranch_scc1 {sk}")
        p("s_mul_i32 s73, s70, 14")
        p("s_add_u32 s72, s72, s73")
        p("s_lshr_b32 s73, s72, 3")
        p("s_and_b32 s74, s72, 7")
        p("s_lshl_b32 s75, s73, 14")
        p("s_lshl_b32 s76, s74, 7")
        p("s_add_u32 s75, s75, s76")
        for q in range(2):
            p(f"s_add_u32 m0, s71, {i*2048 + q*1024}")
            p(f"s_add_u32 s62, s75, {q*8192}")
            p("buffer_load_dwordx4 v16, s[40:43], s62 offen lds")
        p("s_waitcnt vmcnt(0)")
        for dt in range(2):
            b = 48 + 4 * dt
            p(f"ds_read_b64_tr_b16 v[{b}:{b+1}], v{17+dt} offset:{i*2048}")
            p(f"ds_read_b64_tr_b16 v[{b+2}:{b+3}], v{17+dt} offset:{i*2048+1024}")
        p(f"s_mul_i32 s75, s74, {NSTEP}")
        p("s_add_u32 s75, s75, s73")
        p("s_add_u32 s75, s75, 64")
        p("s_lshl_b32 s75, s75, 11")
        p(f"s_add_u32 s75, s75, {WS_WC}")
        p("buffer_store_dwordx4 v[48:51], v9, s[44:47], s75 offen")
        p("buffer_store_dwordx4 v[52:55], v9, s[44:47], s75 offen offset:1024")
        p.label(sk)
    p("v_lshlrev_b32 v13, 10, v2")
    p("v_lshl_add_u32 v13, v3, 3, v13")
    p("s_mov_b32 s76, 0x05040100")
    p("s_mov_b32 s77, 0x07060302")
    for i in range(4):
        p("s_lshl_b32 s72, s70, 4")
        p("s_lshl_b32 s73, s24, 2")
        p("s_add_u32 s72, s72, s73")
        p(f"s_add_u32 s72, s72, {i}")
        p("s_lshr_b32 s73, s72, 7")
        p("s_bfe_u32 s74, s72, 0x60001")
        p("s_and_b32 s75, s72, 1")
        p("s_lshl_b32 s78, s73, 6")
        p("s_lshl_b32 s79, s75, 5")
        p("s_add_u32 s78, s78, s79")
        p("s_lshl_b32 s78, s78, 10")
        p("s_lshl_b32 s79, s74, 4")
        p("s_add_u32 s78, s78, s79")
        b = 56 + 8 * i
        p(f"buffer_load_dwordx2 v[{b}:{b+1}], v13, s[32:35], s78 offen")
        p(f"buffer_load_dwordx2 v[{b+2}:{b+3}], v13, s[36:39], s78 offen")
        p(f"v_perm_b32 v{b+4}, v{b+2}, v{b}, s76")
        p(f"v_perm_b32 v{b+5}, v{b+2}, v{b}, s77")
        p(f"v_perm_b32 v{b+6}, v{b+3}, v{b+1}, s76")
        p(f"v_perm_b32 v{b+7}, v{b+3}, v{b+1}, s77")
        p(f"s_mul_i32 s78, s73, {NSTEP}")
        p("s_add_u32 s78, s78, s74")
        p("s_lshl_b32 s78, s78, 1")
        p("s_add_u32 s78, s78, s75")
        p("s_lshl_b32 s78, s78, 10")
        p(f"s_add_u32 s78, s78, {WS_WC}")
        p(f"buffer_store_dwordx4 v[{b+4}:{b+7}], v9, s[44:47], s78 offen")
    if stamps:
        stamp()
        stamp_out([80, 82, 84, 86, 88, 90, 90, 90], 44)
    p.label(end)
    p("s_endpgm")
    code = kernel_header(name) + finalize(p)
    desc = kernel_desc(name, 256, 100, 128)
    return code, desc, 163840
```

```python
from asmlib import *
from layout import *
from gen_k2 import KA, srd, add64, kernel_header, kernel_desc

SLOT = 24576
U0 = 98304
M_STM = 65536
M_STR = 66560
M_CSB = 67072
M_E = 67584
M_TB = 73728
M_CSW = U0
LOG2E = 1.4426950408889634
WS_CSP = WS_END
WS_CSP_BYTES = 16 * 16 * 128 * 4
WS_END2 = WS_CSP + WS_CSP_BYTES
STV = 115


def f32(x):
    import struct
    return "0x%08x" % struct.unpack("<I", struct.pack("<f", x))[0]


def gen_k1(name="k1_kernel", stamps=False, a_tiles=(1, 3), b_tiles=(0, 2), xcdmap=0, prefetch=False, rot=False):
    p = Prog()
    end = name + "_end"
    stn = {"i": 1}

    def stamp():
        if stamps:
            p("s_memtime s[94:95]")
            p("s_waitcnt lgkmcnt(0)")
            p(f"v_writelane_b32 v{STV}, s94, {stn['i']}")
            stn["i"] += 1

    def bar():
        p("s_barrier")
        stamp()

    p("s_cmp_ge_u32 s2, 256")
    p(f"s_cbranch_scc1 {end}")
    if stamps:
        p("s_memtime s[80:81]")
        p("s_memrealtime s[90:91]")
    p(f"s_load_dwordx2 s[4:5], s[0:1], {KA['x']}")
    p(f"s_load_dwordx4 s[8:11], s[0:1], {KA['bre']}")
    p(f"s_load_dwordx4 s[16:19], s[0:1], {KA['w1']}")
    p(f"s_load_dwordx4 s[20:23], s[0:1], {KA['dbg']}")
    p(f"s_load_dwordx4 s[12:15], s[0:1], {KA['lre']}")
    p(f"s_load_dwordx2 s[6:7], s[0:1], {KA['ldt']}")
    p("v_lshrrev_b32 v1, 6, v0")
    p("s_and_b32 s25, s2, 7")
    p("v_readfirstlane_b32 s24, v1")
    p("v_and_b32 v1, 63, v0")
    p("s_lshr_b32 s26, s2, 3")
    if xcdmap == 0:
        p("s_lshr_b32 s27, s26, 4")
        p("s_lshl_b32 s25, s25, 1")
        p("s_add_u32 s27, s27, s25")
        p("s_and_b32 s28, s26, 15")
    else:
        p("s_lshr_b32 s27, s26, 3")
        p("s_lshr_b32 s28, s25, 1")
        p("s_lshl_b32 s28, s28, 2")
        p("s_add_u32 s27, s27, s28")
        p("s_and_b32 s28, s26, 7")
        p("s_and_b32 s25, s25, 1")
        p("s_lshl_b32 s25, s25, 3")
        p("s_add_u32 s28, s28, s25")
    p("s_lshr_b32 s29, s28, 2")
    p("s_mul_i32 s29, s29, 7")
    p("s_and_b32 s30, s28, 3")
    p("s_lshl_b32 s31, s30, 1")
    p("s_add_u32 s29, s29, s31")
    if stamps:
        p(f"v_mov_b32 v{STV}, 0")
        p("s_mov_b32 s92, s24")
    p("v_and_b32 v2, 31, v1")
    p("v_lshrrev_b32 v3, 5, v1")
    p("s_and_b32 s31, s24, 3")
    p("s_lshl_b32 s52, s31, 12")
    p("s_cmp_ge_u32 s24, 4")
    p(";@carry")
    p(f"s_cbranch_scc1 {name}_B")

    c0 = -2.0 * 0.7978845608028654 * LOG2E
    c1 = c0 * 0.044715

    def addrL(dst):
        p(f"v_bfe_u32 v{dst}, v2, 1, 3")
        p(f"v_xor_b32 v{dst}, v{dst}, v3")
        p(f"v_lshlrev_b32 v{dst}, 4, v{dst}")
        p(f"v_lshl_add_u32 v{dst}, v2, 7, v{dst}")

    def ffn_setup():
        p("s_lshl_b32 s54, s31, 8")
        p(f"s_add_u32 s54, s54, {M_STM}")
        p("v_lshlrev_b32 v12, 3, v2")
        p("v_add_u32 v12, s54, v12")
        p("ds_read_b64 v[110:111], v12")
        p("v_bfe_u32 v13, v1, 2, 2")
        p("v_lshl_add_u32 v14, v3, 3, v13")
        p("v_lshlrev_b32 v14, 7, v14")
        p("v_bfe_u32 v15, v1, 4, 1")
        p("v_lshlrev_b32 v15, 1, v15")
        p("v_bfe_u32 v12, v1, 1, 1")
        p("v_add_u32 v15, v15, v12")
        p("v_lshrrev_b32 v12, 1, v13")
        p("v_lshl_add_u32 v15, v12, 2, v15")
        p("v_lshl_add_u32 v14, v15, 4, v14")
        p("v_and_b32 v12, 1, v1")
        p("v_lshl_add_u32 v6, v12, 3, v14")
        p("v_xor_b32 v7, 64, v6")
        p(f"v_add_u32 v4, {U0}, v6")
        p(f"v_add_u32 v5, {U0}, v7")
        p("v_lshlrev_b32 v9, 4, v1")
        p("v_mov_b32 v104, 0")
        p("v_mov_b32 v105, 0")
        p("v_mov_b32 v106, 0")
        p("v_mov_b32 v107, 0")
        p("v_rcp_f32 v108, v111")
        p("s_mov_b32 exec_hi, 0")
        p("v_cvt_pk_bf16_f32 v104, -v110, -v110")
        p("v_lshrrev_b32 v105, 16, v111")
        p("s_mov_b32 exec_hi, -1")
        p("v_mul_f32 v109, v108, v108")
        p("v_mul_f32 v109, v109, v108")
        p(f"v_mul_f32 v109, {f32(c1)}, v109")
        p(f"v_mul_f32 v108, {f32(c0)}, v108")
        p("v_mov_b32 v110, v111")
        p("s_lshl_b32 s60, s27, 1")
        p("s_lshr_b32 s61, s31, 1")
        p("s_add_u32 s60, s60, s61")
        p(f"s_mul_i32 s60, s60, {NSTEP*2048}")
        p("s_and_b32 s61, s31, 1")
        p("s_lshl_b32 s61, s61, 10")
        p("s_add_u32 s60, s60, s61")
        p(f"s_add_u32 s60, s60, {WS_H}")
        p("v_lshlrev_b32 v10, 12, v3")
        p("v_lshl_add_u32 v10, v2, 2, v10")
        p("v_lshlrev_b32 v11, 1, v2")

    def poll(lab, DBGS, masks):
        p("s_lshl_b32 s55, s28, 4")
        p("v_mov_b32 v8, s55")
        p("s_mov_b32 s62, 0")
        p.label(lab)
        p(f"buffer_load_dwordx4 v[12:15], v8, s[{DBGS}:{DBGS+3}], 0 offen sc1")
        p("s_waitcnt vmcnt(0)")
        for k in range(4):
            p(f"v_readfirstlane_b32 s{96+k}, v{12+k}")
        for k in range(4):
            p(f"s_andn2_b32 s{96+k}, {masks[k]}, s{96+k}")
        p("s_or_b32 s96, s96, s97")
        p("s_or_b32 s98, s98, s99")
        p("s_or_b32 s96, s96, s98")
        p("s_cmp_eq_u32 s96, 0")
        p(f"s_cbranch_scc1 {lab}_done")
        p("s_add_u32 s62, s62, 1")
        p("s_cmp_gt_u32 s62, 100000")
        p(f"s_cbranch_scc1 {lab}_done")
        p("s_sleep 2")
        p(f"s_branch {lab}")
        p.label(lab + "_done")

    ALL1 = ["0x01010101"] * 4

    def ffn_tile(ti, WSS, B1S):
        acc = 48
        NB = 6
        areg = 4 + ti
        p("s_lshl_b32 s61, s28, 13")
        p(f"s_add_u32 s61, s61, {WS_CSP + ti*128}")
        for j in range(8):
            p(f"buffer_load_dword v{64+j}, v10, s[{WSS}:{WSS+3}], s61 offen offset:{j*512} sc1")
        p("s_lshl_b32 s61, s29, 7")
        p(f"s_add_u32 s61, s61, {ti*64}")
        p(f"buffer_load_ushort v72, v11, s[{B1S}:{B1S+3}], s61 offen")

        def rd(s):
            b = 80 + (s % NB) * 4
            p(f"ds_read_b64_tr_b16 v[{b}:{b+1}], v{areg} offset:{s*2048}")
            p(f"ds_read_b64_tr_b16 v[{b+2}:{b+3}], v{areg} offset:{s*2048+512}")
        for s in range(NB - 1):
            rd(s)
        for s in range(32):
            if s + NB - 1 < 32:
                rd(s + NB - 1)
            b = 80 + (s % NB) * 4
            c = "0" if s == 0 else f"v[{acc}:{acc+15}]"
            p(f"v_mfma_f32_32x32x16_bf16 v[{acc}:{acc+15}], v[{b}:{b+3}], a[{4*s}:{4*s+3}], {c}")
            if s == 24:
                stamp()
                for j in range(1, 8):
                    p(f"v_add_f32 v64, v64, v{64+j}")
                p("v_mov_b32 v65, v64")
                p("v_permlane32_swap_b32 v64, v65")
                p("v_add_f32 v64, v64, v65")
                p("v_cvt_pk_bf16_f32 v65, v64, v64")
                p("v_and_b32 v66, 0xffff0000, v65")
                p("v_sub_f32 v66, v64, v66")
                p("v_mov_b32 v76, 0")
                p("v_mov_b32 v77, 0")
                p("v_mov_b32 v78, 0")
                p("v_mov_b32 v79, 0")
                p("s_mov_b32 exec_hi, 0")
                p("v_cvt_pk_bf16_f32 v76, v64, v66")
                p("v_mov_b32 v77, v72")
                p("s_mov_b32 exec_hi, -1")
                stamp()
        p(f"v_mfma_f32_32x32x16_bf16 v[{acc}:{acc+15}], v[76:79], v[104:107], v[{acc}:{acc+15}]")
        stamp()
        for j in range(16):
            x = acc + j
            t = 64 + j
            p(f"v_mul_f32 v{t}, v{x}, v{x}")
            p(f"v_fma_f32 v{t}, v{t}, v109, v108")
            p(f"v_mul_f32 v{t}, v{t}, v{x}")
            p(f"v_exp_f32 v{t}, v{t}")
            p(f"v_fma_f32 v{t}, v{t}, v110, v110")
            p(f"v_rcp_f32 v{t}, v{t}")
            p(f"v_mul_f32 v{t}, v{t}, v{x}")
        for u in range(2):
            for q in range(4):
                p(f"v_cvt_pk_bf16_f32 v{80+4*u+q}, v{64+8*u+2*q}, v{64+8*u+2*q+1}")
            p("s_lshl_b32 s61, s29, 2")
            p(f"s_add_u32 s61, s61, {64+2*ti+u}")
            p("s_lshl_b32 s61, s61, 11")
            p("s_add_u32 s61, s61, s60")
            p(f"buffer_store_dwordx4 v[{80+4*u}:{83+4*u}], v9, s[{WSS}:{WSS+3}], s61 offen")

    def stamp_out():
        p("s_waitcnt vmcnt(0)")
        stamp()
        p(f"v_writelane_b32 v{STV}, s80, 0")
        p(f"v_writelane_b32 v{STV}, s90, 62")
        p("s_memrealtime s[90:91]")
        p("s_waitcnt lgkmcnt(0)")
        p(f"v_writelane_b32 v{STV}, s90, 63")
        p("s_lshl_b32 s19, s2, 3")
        p("s_add_u32 s19, s19, s92")
        p("s_lshl_b32 s19, s19, 8")
        p("s_add_u32 s19, s19, 0x4000000")
        add64(p, 72, 73, 22, 23, "s19")
        srd(p, 76, 72, 73, 256)
        p("v_lshlrev_b32 v72, 2, v1")
        p(f"buffer_store_dword v{STV}, v72, s[76:79], 0 offen")

    p("v_and_b32 v13, 7, v1")
    p("v_lshrrev_b32 v14, 4, v1")
    p("v_xor_b32 v13, v13, v14")
    p("v_lshlrev_b32 v13, 4, v13")
    p("v_lshrrev_b32 v14, 3, v1")
    p("v_lshl_add_u32 v127, v14, 10, v13")
    p("v_xor_b32 v115, 64, v127" if not stamps else "v_xor_b32 v111x, 64, v127".replace("v111x", "v125"))
    VB1 = 115 if not stamps else 125
    p("s_lshl_b32 s55, s28, 5")
    p("s_and_b32 s56, s24, 1")
    p("s_lshl_b32 s56, s56, 4")
    p("s_add_u32 s55, s55, s56")
    p("s_lshl_b32 s55, s55, 10")
    p("s_lshl_b32 s58, s24, 11")
    p("s_waitcnt lgkmcnt(0)")
    p("s_cmp_ge_u32 s24, 2")
    p("s_cselect_b32 s68, s10, s8")
    p("s_cselect_b32 s69, s11, s9")
    p("s_and_b32 s69, s69, 0xffff")
    p("s_mov_b32 s70, 0x80000")
    p("s_mov_b32 s71, 0x00020000")

    def a_dmas(s):
        base = (s % 4) * SLOT
        for i in range(2):
            p(f"s_add_u32 m0, s58, {base + 16384 + i*1024}")
            p(f"s_add_u32 s62, s55, {s*128 + i*8192}")
            p(f"buffer_load_dwordx4 v{127 if i == 0 else VB1}, s[68:71], s62 offen lds")
        p.mark(f"a{s}")
    for s_ in range(3):
        a_dmas(s_)
    addrL(12)
    for u in range(4):
        p(f"v_xor_b32 v{8+u}, {32*u}, v12")
        p(f"v_add_u32 v{4+u}, s52, v{8+u}")
        p(f"v_add_u32 v{8+u}, 16384, v{8+u}")
    srd(p, 32, 22, 23, WS_END2)
    srd(p, 36, 20, 21, 256)
    srd(p, 40, 12, 13, 1024)
    srd(p, 44, 14, 15, 1024)
    srd(p, 48, 6, 7, 1024)
    srd(p, 64, 18, 19, 3584)
    p("s_lshl_b32 s53, s28, 6")
    p("v_lshlrev_b32 v13, 1, v2")
    p("buffer_load_ushort v112, v13, s[40:43], s53 offen")
    p("buffer_load_ushort v113, v13, s[44:47], s53 offen")
    p("buffer_load_ushort v114, v13, s[48:51], s53 offen")
    A_RE, A_IM, A16_RE, A16_IM, A128_RE, A128_IM, AS_RE, AS_IM, C_RE, C_IM = 116, 117, 118, 119, 120, 121, 122, 123, 124, 125
    SEG = 126

    def ssm_params():
        p("v_lshlrev_b32 v112, 16, v112")
        p("v_lshlrev_b32 v113, 16, v113")
        p("v_lshlrev_b32 v114, 16, v114")
        p(f"v_mul_f32 v114, {f32(LOG2E)}, v114")
        p("v_exp_f32 v114, v114")
        p("v_cvt_pk_bf16_f32 v114, v114, v114")
        p("v_and_b32 v114, 0xffff0000, v114")
        p("v_mul_f32 v14, v114, v112")
        p("v_mul_f32 v15, v114, v113")
        p(f"v_mul_f32 v14, {f32(LOG2E)}, v14")
        p(f"v_mul_f32 v15, {f32(0.15915494309189535)}, v15")

        def cpow(n_txt, dre, dim):
            p(f"v_mul_f32 v12, {n_txt}, v14")
            p(f"v_mul_f32 v13, {n_txt}, v15")
            p("v_exp_f32 v12, v12")
            p("v_fract_f32 v13, v13")
            p(f"v_cos_f32 v{dre}, v13")
            p(f"v_sin_f32 v{dim}, v13")
            p(f"v_mul_f32 v{dre}, v{dre}, v12")
            p(f"v_mul_f32 v{dim}, v{dim}, v12")
        cpow("1.0", A_RE, A_IM)
        cpow(f32(16.0), A16_RE, A16_IM)
        cpow(f32(128.0), A128_RE, A128_IM)
        p("s_lshl_b32 s54, s31, 1")
        p(f"v_add_u32 v{SEG}, s54, v3")
        p(f"v_cvt_f32_u32 v127, v{SEG}")
        p(f"v_mul_f32 v127, {f32(16.0)}, v127")
        cpow("v127", AS_RE, AS_IM)
        p(f"v_add_f32 v12, -1.0, v{A_RE}")
        p("v_mul_f32 v13, v112, v112")
        p("v_fmac_f32 v13, v113, v113")
        p("v_rcp_f32 v13, v13")
        p("v_add_f32 v13, v13, v13")
        p(f"v_mul_f32 v{C_RE}, v12, v112")
        p(f"v_fmac_f32 v{C_RE}, v{A_IM}, v113")
        p(f"v_mul_f32 v{C_IM}, v{A_IM}, v112")
        p(f"v_fma_f32 v{C_IM}, -v12, v113, v{C_IM}")
        p(f"v_mul_f32 v{C_RE}, v{C_RE}, v13")
        p(f"v_mul_f32 v{C_IM}, v{C_IM}, v13")

    def slot_step(s, regs):
        if s < 7:
            d = SLOT if (s % 4) != 3 else -3 * SLOT
            for r in regs:
                if d > 0:
                    p(f"v_add_u32 v{r}, {d}, v{r}")
                else:
                    p(f"v_subrev_u32 v{r}, {-d}, v{r}")

    def a_reads(s):
        bb = 48 + 32 * (s & 1)
        for u in range(4):
            p(f"ds_read_b128 a[{16*s+4*u}:{16*s+4*u+3}], v{4+u}")
            p(f"ds_read_b128 v[{bb+8*u}:{bb+8*u+3}], v{8+u}")
            p(f"ds_read_b128 v[{bb+8*u+4}:{bb+8*u+7}], v{8+u} offset:4096")
        slot_step(s, range(4, 12))

    def a_mfma(s):
        bb = 48 + 32 * (s & 1)
        for u in range(4):
            c0_ = "0" if (s == 0 and u == 0) else "v[16:31]"
            c1_ = "0" if (s == 0 and u == 0) else "v[32:47]"
            p(f"v_mfma_f32_32x32x16_bf16 v[16:31], a[{16*s+4*u}:{16*s+4*u+3}], v[{bb+8*u}:{bb+8*u+3}], {c0_}")
            p(f"v_mfma_f32_32x32x16_bf16 v[32:47], a[{16*s+4*u}:{16*s+4*u+3}], v[{bb+8*u+4}:{bb+8*u+7}], {c1_}")

    for s in range(8):
        p.waitvm(f"a{s}")
        bar()
        a_reads(s)
        if s + 3 <= 7:
            a_dmas(s + 3)
        if s >= 1:
            a_mfma(s - 1)
        if s == 6:
            ssm_params()
        if s == 7:
            a_mfma(7)
    p("s_waitcnt lgkmcnt(0)")
    bar()
    p("s_lshl_b32 s54, s31, 8")
    p(f"s_add_u32 s54, s54, {M_STM}")
    p("v_lshlrev_b32 v12, 3, v2")
    p("v_add_u32 v12, s54, v12")
    p("ds_read_b32 v48, v12")
    p("v_lshlrev_b32 v13, 2, v2")
    p(f"v_add_u32 v13, {M_CSB}, v13")
    p("ds_read_b32 v49, v13")
    p("ds_read_b32 v50, v13 offset:128")
    p("s_lshl_b32 s54, s31, 7")
    p(f"s_add_u32 s54, s54, {M_STR}")
    p("v_lshlrev_b32 v14, 6, v3")
    p("v_add_u32 v14, s54, v14")
    for i in range(4):
        p(f"ds_read_b128 v[{80+4*i}:{83+4*i}], v14 offset:{16*i}")
    for i in range(52, 64):
        p(f"v_mov_b32 v{i}, 0")
    p("v_cvt_pk_bf16_f32 v51, v49, v50")
    p("v_lshlrev_b32 v64, 16, v51")
    p("v_and_b32 v65, 0xffff0000, v51")
    p("v_sub_f32 v64, v49, v64")
    p("v_sub_f32 v65, v50, v65")
    p("s_mov_b32 exec_hi, 0")
    p("v_cvt_pk_bf16_f32 v52, -v48, -v48")
    p("v_cvt_pk_bf16_f32 v56, v49, v64")
    p("v_cvt_pk_bf16_f32 v60, v50, v65")
    p("s_mov_b32 exec_hi, -1")
    p("v_mfma_f32_32x32x16_bf16 v[16:31], v[52:55], v[56:59], v[16:31]")
    p("v_mfma_f32_32x32x16_bf16 v[32:47], v[52:55], v[60:63], v[32:47]")
    for r in range(16):
        p(f"v_mul_f32 v{16+r}, v{16+r}, v{80+r}")
    for r in range(16):
        p(f"v_mul_f32 v{32+r}, v{32+r}, v{80+r}")

    def cstep(dre, dim, sre, sim, ar, ai, inre, inim):
        p(f"v_fma_f32 v{dre}, v{ar}, v{sre}, v{inre}")
        p(f"v_fma_f32 v{dim}, v{ar}, v{sim}, v{inim}")
        p(f"v_fma_f32 v{dre}, -v{ai}, v{sim}, v{dre}")
        p(f"v_fma_f32 v{dim}, v{ai}, v{sre}, v{dim}")
    cur = (16, 32)
    for r in range(1, 16):
        nxt = (96, 97) if r & 1 else (98, 99)
        cstep(nxt[0], nxt[1], cur[0], cur[1], A_RE, A_IM, 16 + r, 32 + r)
        cur = nxt
    assert cur == (96, 97)
    p(f"v_lshlrev_b32 v13, 8, v{SEG}")
    p("v_lshl_add_u32 v13, v2, 3, v13")
    p(f"v_add_u32 v13, {M_E}, v13")
    p("ds_write_b64 v13, v[96:97]")
    p("s_waitcnt lgkmcnt(0)")
    bar()
    p("v_lshlrev_b32 v13, 3, v2")
    p(f"v_add_u32 v13, {M_E}, v13")
    for s in range(8):
        p(f"ds_read_b64 v[{48+2*s}:{49+2*s}], v13 offset:{256*s}")
    p("v_mov_b32 v112, 0")
    p("v_mov_b32 v113, 0")
    cur = (48, 49)
    for s in range(1, 8):
        p(f"v_cmp_eq_u32 vcc, {s}, v{SEG}")
        p(f"v_cndmask_b32 v112, v112, v{cur[0]}, vcc")
        p(f"v_cndmask_b32 v113, v113, v{cur[1]}, vcc")
        nxt = (96, 97) if s & 1 else (98, 99)
        cstep(nxt[0], nxt[1], cur[0], cur[1], A16_RE, A16_IM, 48 + 2 * s, 49 + 2 * s)
        cur = nxt
    assert cur == (96, 97)
    skip = name + "_nopub"
    p("s_cmp_lg_u32 s24, 0")
    p(f"s_cbranch_scc1 {skip}")
    p("s_lshl_b32 s54, s27, 4")
    p("s_add_u32 s54, s54, s28")
    p("s_lshl_b32 s54, s54, 8")
    p(f"s_add_u32 s54, s54, {WS_E}")
    p("v_lshlrev_b32 v13, 3, v2")
    p("s_mov_b32 exec_hi, 0")
    p.nocount()
    p("buffer_store_dwordx2 v[96:97], v13, s[32:35], s54 offen sc1")
    p("s_waitcnt vmcnt(0)")
    p("s_mov_b64 exec, 1")
    p("v_mov_b32 v98, 3")
    p("s_lshl_b32 s55, s28, 4")
    p("s_add_u32 s55, s55, s27")
    p("v_mov_b32 v99, s55")
    p.nocount()
    p("buffer_store_byte v98, v99, s[36:39], 0 offen sc1")
    p("s_mov_b64 exec, -1")
    p.label(skip)
    stamp()
    ffn_setup()
    poll(name + "_pollcA", 36, ALL1)
    stamp()
    lightA = name + "_lightA"
    for t in [t for t in a_tiles if t < 2]:
        ffn_tile(t, 32, 64)
    stamp()
    p("s_cmp_eq_u32 s30, 3")
    p(f"s_cbranch_scc1 {lightA}")
    bar()
    for t in [t for t in a_tiles if t >= 2]:
        ffn_tile(t, 32, 64)
    p.label(lightA)
    stamp()
    p("s_lshl_b32 s54, s27, 3")
    p("s_mov_b64 s[68:69], 1")
    p("s_lshl_b64 s[68:69], s[68:69], s54")
    p("s_sub_u32 s68, s68, 1")
    p("s_subb_u32 s69, s69, 0")
    p("s_cmp_ge_u32 s27, 8")
    p("s_cselect_b32 s68, -1, s68")
    p("s_cselect_b32 s69, -1, s69")
    p("s_sub_u32 s54, s54, 64")
    p("s_mov_b64 s[70:71], 1")
    p("s_lshl_b64 s[70:71], s[70:71], s54")
    p("s_sub_u32 s70, s70, 1")
    p("s_subb_u32 s71, s71, 0")
    p("s_cmp_gt_u32 s27, 8")
    p("s_cselect_b32 s70, s70, 0")
    p("s_cselect_b32 s71, s71, 0")
    for k in range(4):
        p(f"s_and_b32 s{68+k}, s{68+k}, 0x02020202")
    poll(name + "_pollE", 36, ["s68", "s69", "s70", "s71"])
    stamp()
    p("s_lshl_b32 s54, s28, 8")
    p(f"s_add_u32 s54, s54, {WS_E}")
    p("v_lshlrev_b32 v13, 3, v2")
    for j in range(15):
        p(f"buffer_load_dwordx2 v[{48+2*j}:{49+2*j}], v13, s[32:35], s54 offen sc1")
        p("s_add_u32 s54, s54, 4096")
    p("v_mov_b32 v96, 0")
    p("v_mov_b32 v97, 0")
    p("s_waitcnt vmcnt(0)")
    hdone = name + "_hdone"
    for j in range(15):
        p(f"s_cmp_le_u32 s27, {j}")
        p(f"s_cbranch_scc1 {hdone}")
        cstep(98, 99, 96, 97, A128_RE, A128_IM, 48 + 2 * j, 49 + 2 * j)
        p("v_mov_b32 v96, v98")
        p("v_mov_b32 v97, v99")
    p.label(hdone)
    cstep(98, 99, 96, 97, AS_RE, AS_IM, 112, 113)
    p("s_lshl_b32 s54, s31, 12")
    p(f"s_add_u32 s54, s54, {M_TB}")
    p("v_lshrrev_b32 v12, 2, v2")
    p("v_lshlrev_b32 v13, 1, v3")
    p("v_xor_b32 v12, v12, v13")
    p("v_and_b32 v13, 3, v2")
    p("v_lshlrev_b32 v13, 2, v13")
    p("v_lshl_add_u32 v13, v3, 9, v13")
    p("v_add_u32 v13, s54, v13")
    K0S = [0, 1, 4, 5]
    for i, k0 in enumerate(K0S):
        p(f"v_xor_b32 v14, {k0}, v12")
        p(f"v_lshl_add_u32 v{4+i}, v14, 4, v13")
    cur = (98, 99)
    for r in range(16):
        a, b = r >> 2, r & 3
        k0 = 4 * (a & 1) + (b >> 1)
        nxt = (96, 97) if (r & 1) == 0 else (98, 99)
        cstep(nxt[0], nxt[1], cur[0], cur[1], A_RE, A_IM, 16 + r, 32 + r)
        cur = nxt
        p(f"v_mul_f32 v84, v{C_RE}, v{cur[0]}")
        p(f"v_mul_f32 v85, v{C_RE}, v{cur[1]}")
        p(f"v_fma_f32 v84, -v{C_IM}, v{cur[1]}, v84")
        p(f"v_fma_f32 v85, v{C_IM}, v{cur[0]}, v85")
        p(f"v_cvt_pk_bf16_f32 v{48+r}, v84, -v85")
        p(f"ds_write_b32 v{4+K0S.index(k0)}, v{48+r} offset:{(8*a+b)*128}")
    addrL(12)
    p("v_add_u32 v12, s54, v12")
    p("s_waitcnt lgkmcnt(0)")
    for u in range(4):
        p(f"v_xor_b32 v13, {32*u}, v12")
        p(f"ds_read_b128 v[{64+4*u}:{67+4*u}], v13")
    for u in range(4):
        p("s_lshl_b32 s61, s28, 2")
        p(f"s_add_u32 s61, s61, {u}")
        p("s_lshl_b32 s61, s61, 11")
        p("s_add_u32 s61, s61, s60")
        p(f"buffer_store_dwordx4 v[{64+4*u}:{67+4*u}], v9, s[32:35], s61 offen")
    if stamps:
        stamp_out()
    p("s_endpgm")

    p(";@carry")
    p.label(name + "_B")
    stn["i"] = 1
    p("s_sub_u32 s24, s24, 4")
    p("v_and_b32 v13, 7, v1")
    p("v_lshrrev_b32 v14, 4, v1")
    p("v_xor_b32 v13, v13, v14")
    p("v_lshlrev_b32 v13, 4, v13")
    p("v_lshlrev_b32 v14, 4, v3")
    p("v_bfe_u32 v15, v1, 3, 2")
    p("v_add_u32 v14, v14, v15")
    p("s_lshl_b32 s53, s24, 5")
    p("v_add_u32 v14, s53, v14")
    p("v_lshl_add_u32 v16, v14, 10, v13")
    p("v_xor_b32 v17, 64, v16")
    p("v_lshrrev_b32 v14, 3, v1")
    p("v_lshl_add_u32 v18, v14, 10, v13")
    p("v_xor_b32 v19, 64, v18")
    p("s_lshl_b32 s54, s27, 17")
    p("s_lshl_b32 s55, s28, 5")
    p("s_and_b32 s56, s24, 1")
    p("s_lshl_b32 s56, s56, 4")
    p("s_add_u32 s55, s55, s56")
    p("s_lshl_b32 s55, s55, 10")
    p("s_lshl_b32 s57, s24, 12")
    p("s_lshl_b32 s58, s24, 11")
    p("s_waitcnt lgkmcnt(0)")
    srd(p, 32, 4, 5, 2048 * 1024)
    p("s_cmp_ge_u32 s24, 2")
    p("s_cselect_b32 s36, s10, s8")
    p("s_cselect_b32 s37, s11, s9")
    p("s_and_b32 s37, s37, 0xffff")
    p("s_mov_b32 s38, 0x80000")
    p("s_mov_b32 s39, 0x00020000")

    def dma_list(m0_base, m0_add, voff, srdn, soff_base, soff_add):
        return [f"s_add_u32 m0, {m0_base}, {m0_add}",
                f"s_add_u32 s62, {soff_base}, {soff_add}",
                f"buffer_load_dwordx4 v{voff}, s[{srdn}:{srdn+3}], s62 offen lds"]

    if rot:
        p("s_add_u32 s61, s28, s27")
        p("s_and_b32 s61, s61, 7")
    else:
        p("s_mov_b32 s61, 0")

    def stage_dmas(s):
        base = (s % 4) * SLOT
        out = []
        pre = [f"s_add_u32 s71, s61, {s}", "s_and_b32 s71, s71, 7", "s_lshl_b32 s71, s71, 7",
               "s_add_u32 s72, s54, s71", "s_add_u32 s73, s55, s71"]
        for i in range(4):
            out.append((pre if i == 0 else []) + dma_list("s57", base + i * 1024, 16 + (i & 1), 32, "s72", i * 4096))
        return out

    def unit_dmas(un, ldsb_sgpr):
        return [dma_list(ldsb_sgpr, i * 1024, 20, 40, "s68" if i < 8 else "s74", (i & 7) * 8 * 3584 + un * 128) for i in range(16)]

    def issue(dmas, fill=()):
        fill = list(fill)
        n = len(dmas)
        per = (len(fill) + n - 1) // n if n else 0
        for i, d in enumerate(dmas):
            for t in d:
                p(t)
            for t in fill[i * per:(i + 1) * per]:
                p(t)
        for t in fill[n * per:]:
            p(t)

    issue(stage_dmas(0)); p.mark("st0")
    srd(p, 40, 16, 17, 512 * 3584)
    p("s_movk_i32 s53, 3584")
    p("v_lshrrev_b32 v13, 4, v1")
    p("v_mul_lo_u32 v13, v13, s53")
    p("v_and_b32 v15, 15, v1")
    p("v_lshl_add_u32 v13, v15, 4, v13")
    p("s_lshl_b32 s59, s27, 5")
    p("s_lshl_b32 s60, s24, 3")
    p("s_add_u32 s59, s59, s60")
    p("s_mul_i32 s59, s59, 3584")
    p("s_lshl_b32 s60, s29, 7")
    p("s_add_u32 s59, s59, s60")
    p("buffer_load_dwordx4 v[96:99], v13, s[40:43], s59 offen")
    p(f"s_add_u32 s59, s59, {4*3584}")
    p("buffer_load_dwordx4 v[100:103], v13, s[40:43], s59 offen")
    issue(stage_dmas(1)); p.mark("st1")
    issue(stage_dmas(2)); p.mark("st2")
    srd(p, 44, 22, 23, WS_END2)
    srd(p, 48, 18, 19, 3584)
    srd(p, 64, 20, 21, 256)
    p("v_mul_lo_u32 v20, v14, s53")
    p("v_bfe_u32 v15, v1, 4, 1")
    p("v_lshlrev_b32 v15, 2, v15")
    p("v_and_b32 v13, 7, v1")
    p("v_xor_b32 v15, v15, v13")
    p("v_lshl_add_u32 v20, v15, 4, v20")
    addrL(12)
    for u in range(4):
        p(f"v_xor_b32 v{4+u}, {32*u}, v12")
        p(f"v_add_u32 v{4+u}, s52, v{4+u}")
    p("v_and_b32 v13, 15, v1")
    p("v_lshrrev_b32 v14, 4, v1")
    p("v_bfe_u32 v15, v1, 1, 3")
    p("v_xor_b32 v14, v14, v15")
    p("v_lshlrev_b32 v14, 4, v14")
    p("v_lshl_add_u32 v14, v13, 7, v14")
    p("v_add_u32 v8, s52, v14")
    p("v_xor_b32 v9, 64, v8")
    p("s_lshl_b32 s59, s24, 11")
    p("s_add_u32 s59, s59, 16384")
    p("v_add_u32 v10, s59, v14")
    p("v_xor_b32 v11, 64, v10")
    for i in range(4):
        p(f"v_mov_b32 v{92+i}, 0x3f803f80")
    p("s_lshl_b32 s63, s24, 14")
    p(f"s_add_u32 s69, s63, {U0}")
    p("s_lshl_b32 s68, s24, 1")
    p("s_add_u32 s68, s68, s61")
    p("s_add_u32 s74, s68, 1")
    p("s_and_b32 s68, s68, 7")
    p("s_and_b32 s74, s74, 7")
    p(f"s_mul_i32 s68, s68, {64*3584}")
    p(f"s_mul_i32 s74, s74, {64*3584}")
    p("s_lshl_b32 s70, s29, 7")
    p("s_add_u32 s68, s68, s70")
    p("s_add_u32 s74, s74, s70")

    def b_reads(s):
        fb = 44 + 24 * (s & 1)
        p(f"ds_read_b128 v[{fb}:{fb+3}], v8")
        p(f"ds_read_b128 v[{fb+4}:{fb+7}], v9")
        p(f"ds_read_b128 v[{fb+8}:{fb+11}], v8 offset:2048")
        p(f"ds_read_b128 v[{fb+12}:{fb+15}], v9 offset:2048")
        p(f"ds_read_b128 v[{fb+16}:{fb+19}], v10")
        p(f"ds_read_b128 v[{fb+20}:{fb+23}], v11")
        for u in range(4):
            p(f"ds_read_b128 a[{16*s+4*u}:{16*s+4*u+3}], v{4+u}")
        slot_step(s, range(4, 12))

    def b_mfma(s):
        z = (s == 0)
        fb = 44 + 24 * (s & 1)
        M = "v_mfma_f32_16x16x32_bf16"
        f = lambda k: f"v[{fb+4*k}:{fb+4*k+3}]"
        O = "v[92:95]"
        return [
            f"{M} v[24:27], {f(0)}, {f(0)}, {'0' if z else 'v[24:27]'}",
            f"{M} v[28:31], {f(2)}, {f(2)}, {'0' if z else 'v[28:31]'}",
            f"{M} v[32:35], {f(0)}, {O}, {'0' if z else 'v[32:35]'}",
            f"{M} v[36:39], {f(2)}, {O}, {'0' if z else 'v[36:39]'}",
            f"{M} v[40:43], {f(4)}, {O}, {'0' if z else 'v[40:43]'}",
            f"{M} v[24:27], {f(1)}, {f(1)}, v[24:27]",
            f"{M} v[28:31], {f(3)}, {f(3)}, v[28:31]",
            f"{M} v[32:35], {f(1)}, {O}, v[32:35]",
            f"{M} v[36:39], {f(3)}, {O}, v[36:39]",
            f"{M} v[40:43], {f(5)}, {O}, v[40:43]",
        ]

    p.waitvm("st0", lgkm=False); bar()
    b_reads(0)
    issue(stage_dmas(3)); p.mark("st3")
    p.waitvm("st1"); bar()
    b_reads(1)
    issue(stage_dmas(4), b_mfma(0)); p.mark("st4")
    for i in range(4):
        p(f"v_lshlrev_b32 v104, 16, v{96+i}")
        p(f"v_and_b32 v105, 0xffff0000, v{96+i}")
        p(f"v_lshlrev_b32 v106, 16, v{100+i}")
        p(f"v_and_b32 v107, 0xffff0000, v{100+i}")
        p(f"v_add_f32 v{24+0}, v{24+0}, v{24+0}") if False else None
        p(f"v_add_f32 v{96+i}, v104, v106")
        p(f"v_add_f32 v{100+i}, v105, v107")
    p("v_lshrrev_b32 v13, 4, v1")
    p("v_lshlrev_b32 v13, 9, v13")
    p("v_and_b32 v14, 15, v1")
    p("v_lshl_add_u32 v13, v14, 5, v13")
    p("s_lshl_b32 s59, s24, 11")
    p(f"s_add_u32 s59, s59, {M_CSW}")
    p("v_add_u32 v13, s59, v13")
    for i in range(4):
        p(f"ds_write2_b32 v13, v{96+i}, v{100+i} offset0:{2*i} offset1:{2*i+1}")
    p.waitvm("st2"); bar()
    b_reads(2)
    issue(stage_dmas(5), b_mfma(1)); p.mark("st5")
    p("s_lshl_b32 s59, s24, 7")
    p(f"s_add_u32 s59, s59, {M_CSW}")
    p("v_lshlrev_b32 v13, 12, v3")
    p("v_lshl_add_u32 v13, v2, 2, v13")
    p("v_add_u32 v13, s59, v13")
    for j in range(8):
        p(f"ds_read_b32 v{96+j}, v13 offset:{j*512}")
    for j in range(1, 8):
        p(f"v_add_f32 v96, v96, v{96+j}")
    p("v_mov_b32 v97, v96")
    p("v_permlane32_swap_b32 v96, v97")
    p("v_add_f32 v96, v96, v97")
    p("s_lshl_b32 s59, s28, 4")
    p("s_add_u32 s59, s59, s27")
    p("s_lshl_b32 s59, s59, 9")
    p("s_lshl_b32 s60, s24, 7")
    p("s_add_u32 s59, s59, s60")
    p(f"s_add_u32 s59, s59, {WS_CSP}")
    p("v_lshlrev_b32 v13, 2, v2")
    p("s_mov_b32 exec_hi, 0")
    p("buffer_store_dword v96, v13, s[44:47], s59 offen sc1")
    p("s_mov_b32 exec_hi, -1")
    p.mark("csp")
    p.waitvm("st3"); bar()
    b_reads(3)
    issue(stage_dmas(6), b_mfma(2)); p.mark("st6")
    p.waitvm("st4"); bar()
    b_reads(4)
    issue(stage_dmas(7), b_mfma(3)); p.mark("st7")
    p.waitvm("csp"); bar()
    p("s_cmp_lg_u32 s24, 0")
    p(f"s_cbranch_scc1 {name}_nocsf")
    p("s_mov_b64 exec, 1")
    p("v_mov_b32 v96, 1")
    p("s_lshl_b32 s59, s28, 4")
    p("s_add_u32 s59, s59, s27")
    p("v_mov_b32 v97, s59")
    p.nocount()
    p("buffer_store_byte v96, v97, s[64:67], 0 offen sc1")
    p("s_mov_b64 exec, -1")
    p.label(name + "_nocsf")
    u0 = unit_dmas(0, "s69")
    b_reads(5)
    issue(u0[0:6], b_mfma(4))
    p.waitvm("st6"); bar()
    b_reads(6)
    issue(u0[6:12], b_mfma(5))
    p.waitvm("st7"); bar()
    b_reads(7)
    issue(u0[12:16], b_mfma(6)); p.mark("u0")
    for t in b_mfma(7):
        p(t)
    p("v_and_b32 v13, 3, v1")
    p("v_cmp_eq_u32 s[76:77], 1, v13")
    p("v_cmp_eq_u32 s[78:79], 2, v13")
    p("v_cmp_eq_u32 s[82:83], 3, v13")
    for (base, dst) in ((24, 96), (28, 97), (32, 98), (36, 99)):
        p(f"v_cndmask_b32 v{dst}, v{base}, v{base+1}, s[76:77]")
        p(f"v_cndmask_b32 v{dst}, v{dst}, v{base+2}, s[78:79]")
        p(f"v_cndmask_b32 v{dst}, v{dst}, v{base+3}, s[82:83]")
    for rt in range(2):
        q, sm = 96 + rt, 98 + rt
        p(f"v_mul_f32 v{sm}, 0x3b000000, v{sm}")
        p(f"v_mul_f32 v{q}, 0x3b000000, v{q}")
        p(f"v_fma_f32 v{q}, -v{sm}, v{sm}, v{q}")
        p(f"v_max_f32 v{q}, 0, v{q}")
        p(f"v_cvt_pk_bf16_f32 v{sm}, v{sm}, v{q}")
        p(f"v_and_b32 v{q}, 0xffff0000, v{sm}")
        p(f"v_lshlrev_b32 v{sm}, 16, v{sm}")
        p(f"v_add_f32 v{q}, 0x3727c5ac, v{q}")
        p(f"v_cvt_pk_bf16_f32 v{q}, v{q}, v{q}")
        p(f"v_and_b32 v{q}, 0xffff0000, v{q}")
        p(f"v_sqrt_f32 v{q}, v{q}")
        p(f"v_cvt_pk_bf16_f32 v{q}, v{q}, v{q}")
        p(f"v_and_b32 v{q}, 0xffff0000, v{q}")
        p(f"v_rcp_f32 v{100+rt}, v{q}")
    p("v_lshrrev_b32 v13, 4, v1")
    p("v_bfe_u32 v14, v1, 2, 2")
    p("v_cmp_eq_u32 vcc, v13, v14")
    p("s_and_saveexec_b64 s[70:71], vcc")
    p("v_and_b32 v13, 15, v1")
    p("s_lshl_b32 s59, s24, 8")
    p(f"s_add_u32 s59, s59, {M_STM}")
    p("v_lshlrev_b32 v14, 3, v13")
    p("v_add_u32 v14, s59, v14")
    p("v_mov_b32 v102, v98"); p("v_mov_b32 v103, v96")
    p("v_mov_b32 v104, v99"); p("v_mov_b32 v105, v97")
    p("ds_write_b64 v14, v[102:103]")
    p("ds_write_b64 v14, v[104:105] offset:128")
    p("v_bfe_u32 v14, v13, 2, 1")
    p("v_lshlrev_b32 v14, 4, v14")
    p("v_lshrrev_b32 v15, 3, v13")
    p("v_lshl_add_u32 v14, v15, 2, v14")
    p("v_and_b32 v15, 3, v13")
    p("v_add_u32 v14, v14, v15")
    p("s_lshl_b32 s59, s24, 7")
    p(f"s_add_u32 s59, s59, {M_STR}")
    p("v_lshlrev_b32 v15, 2, v14")
    p("v_add_u32 v15, s59, v15")
    p("ds_write_b32 v15, v100")
    p("ds_write_b32 v15, v101 offset:32")
    p("s_cmp_lg_u32 s28, 0")
    p(f"s_cbranch_scc1 {name}_nogst")
    p("v_mov_b32 v103, v100")
    p("v_mov_b32 v105, v101")
    p("s_lshl_b32 s59, s27, 10")
    p("s_lshl_b32 s60, s24, 8")
    p("s_add_u32 s59, s59, s60")
    p(f"s_add_u32 s59, s59, {WS_STATS}")
    p("v_lshlrev_b32 v15, 3, v14")
    p.nocount()
    p("buffer_store_dwordx2 v[102:103], v15, s[44:47], s59 offen")
    p.nocount()
    p("buffer_store_dwordx2 v[104:105], v15, s[44:47], s59 offen offset:64")
    p.label(name + "_nogst")
    p("s_mov_b64 exec, s[70:71]")
    p("v_and_b32 v13, 15, v1")
    p("v_cmp_eq_u32 vcc, 0, v13")
    p("s_and_saveexec_b64 s[70:71], vcc")
    p("v_and_b32 v13, 48, v1")
    p("s_lshl_b32 s59, s24, 6")
    p(f"s_add_u32 s59, s59, {M_CSB}")
    p("v_add_u32 v13, s59, v13")
    p("ds_write_b128 v13, v[40:43]")
    p("s_mov_b64 exec, s[70:71]")
    p("s_waitcnt lgkmcnt(0)")
    bar()
    lightB = name + "_lightB"
    p("s_cmp_eq_u32 s30, 3")
    p(f"s_cbranch_scc1 {lightB}")
    issue(unit_dmas(1, "s63")); p.mark("u1")
    p.waitvm("u0", lgkm=False); bar()
    ffn_setup()
    poll(name + "_pollcB", 64, ALL1)
    stamp()
    for t in [t for t in b_tiles if t < 2]:
        ffn_tile(t, 44, 48)
    stamp()
    bar()
    for t in [t for t in b_tiles if t >= 2]:
        ffn_tile(t, 44, 48)
    if stamps:
        stamp_out()
    p("s_endpgm")
    p.label(lightB)
    stn["i"] = 10
    p("s_waitcnt vmcnt(0)"); bar()
    ffn_setup()
    poll(name + "_pollcL", 64, ALL1)
    stamp()
    for t in [t for t in b_tiles if t < 2]:
        ffn_tile(t, 44, 48)
    stamp()
    p(f"s_load_dwordx4 s[4:7], s[0:1], {KA['cre']}")
    p(f"s_load_dwordx2 s[8:9], s[0:1], {KA['w2']}")
    p("s_lshl_b32 s70, s27, 2")
    p("s_lshr_b32 s71, s28, 2")
    p("s_add_u32 s70, s70, s71")
    p("s_waitcnt lgkmcnt(0)")
    srd(p, 32, 4, 5, 512 * 1024)
    srd(p, 36, 6, 7, 512 * 1024)
    srd(p, 40, 8, 9, 1792 * 1024)
    p("v_lshrrev_b32 v13, 3, v1")
    p("v_bfe_u32 v14, v1, 4, 1")
    p("v_lshlrev_b32 v14, 2, v14")
    p("v_and_b32 v15, 7, v1")
    p("v_xor_b32 v14, v14, v15")
    p("v_lshlrev_b32 v14, 4, v14")
    p("v_lshl_add_u32 v16, v13, 10, v14")
    p("v_bfe_u32 v13, v1, 2, 2")
    p("v_lshl_add_u32 v14, v3, 2, v13")
    p("v_lshlrev_b32 v14, 7, v14")
    p("v_bfe_u32 v15, v1, 4, 1")
    p("v_lshlrev_b32 v15, 1, v15")
    p("v_bfe_u32 v12, v1, 1, 1")
    p("v_add_u32 v15, v15, v12")
    p("v_lshrrev_b32 v12, 1, v13")
    p("v_lshl_add_u32 v15, v12, 2, v15")
    p("v_lshl_add_u32 v14, v15, 4, v14")
    p("v_and_b32 v12, 1, v1")
    p("v_lshl_add_u32 v17, v12, 3, v14")
    p("s_lshl_b32 s71, s24, 13")
    p("v_add_u32 v17, s71, v17")
    p("v_xor_b32 v18, 64, v17")
    p("v_lshlrev_b32 v13, 10, v2")
    p("v_lshl_add_u32 v13, v3, 3, v13")
    p("s_mov_b32 s76, 0x05040100")
    p("s_mov_b32 s77, 0x07060302")
    for i in range(4):
        p("s_lshl_b32 s72, s70, 4")
        p("s_lshl_b32 s73, s24, 2")
        p("s_add_u32 s72, s72, s73")
        p(f"s_add_u32 s72, s72, {i}")
        p("s_lshr_b32 s73, s72, 7")
        p("s_bfe_u32 s74, s72, 0x60001")
        p("s_and_b32 s75, s72, 1")
        p("s_lshl_b32 s78, s73, 6")
        p("s_lshl_b32 s79, s75, 5")
        p("s_add_u32 s78, s78, s79")
        p("s_lshl_b32 s78, s78, 10")
        p("s_lshl_b32 s79, s74, 4")
        p("s_add_u32 s78, s78, s79")
        b = 56 + 8 * i
        p(f"buffer_load_dwordx2 v[{b}:{b+1}], v13, s[32:35], s78 offen")
        p(f"buffer_load_dwordx2 v[{b+2}:{b+3}], v13, s[36:39], s78 offen")
        p(f"s_mul_i32 s78, s73, {NSTEP}")
        p("s_add_u32 s78, s78, s74")
        p("s_lshl_b32 s78, s78, 1")
        p("s_add_u32 s78, s78, s75")
        p("s_lshl_b32 s78, s78, 10")
        p(f"s_add_u32 s{82+i}, s78, {WS_WC}")
    def slab_ids(i):
        p(f"s_add_u32 s72, s24, {4*i}")
        p("s_mul_i32 s73, s70, 14")
        p("s_add_u32 s72, s72, s73")
        p("s_lshr_b32 s73, s72, 3")
        p("s_and_b32 s74, s72, 7")

    def slab_dma(i):
        slab_ids(i)
        p("s_lshl_b32 s75, s73, 14")
        p("s_lshl_b32 s78, s74, 7")
        p("s_add_u32 s75, s75, s78")
        for q in range(2):
            p(f"s_add_u32 m0, s71, {i*2048 + q*1024}")
            p(f"s_add_u32 s62, s75, {q*8192}")
            p("buffer_load_dwordx4 v16, s[40:43], s62 offen lds")

    def slab_out(i):
        slab_ids(i)
        for dt in range(2):
            b = 88 + 4 * dt
            p(f"ds_read_b64_tr_b16 v[{b}:{b+1}], v{17+dt} offset:{i*2048}")
            p(f"ds_read_b64_tr_b16 v[{b+2}:{b+3}], v{17+dt} offset:{i*2048+1024}")
        p(f"s_mul_i32 s75, s74, {NSTEP}")
        p("s_add_u32 s75, s75, s73")
        p("s_add_u32 s75, s75, 64")
        p("s_lshl_b32 s75, s75, 11")
        p(f"s_add_u32 s75, s75, {WS_WC}")
        p("buffer_store_dwordx4 v[88:91], v9, s[44:47], s75 offen")
        p("buffer_store_dwordx4 v[92:95], v9, s[44:47], s75 offen offset:1024")
    for i in range(3):
        slab_dma(i)
    p("s_cmp_ge_u32 s24, 2")
    p(f"s_cbranch_scc1 {name}_noslab3")
    slab_dma(3)
    p.label(name + "_noslab3")
    for i in range(4):
        b = 56 + 8 * i
        p(f"v_perm_b32 v{b+4}, v{b+2}, v{b}, s76")
        p(f"v_perm_b32 v{b+5}, v{b+2}, v{b}, s77")
        p(f"v_perm_b32 v{b+6}, v{b+3}, v{b+1}, s76")
        p(f"v_perm_b32 v{b+7}, v{b+3}, v{b+1}, s77")
        p(f"buffer_store_dwordx4 v[{b+4}:{b+7}], v9, s[44:47], s{82+i} offen")
    p("s_waitcnt vmcnt(4)")
    for i in range(3):
        slab_out(i)
    p("s_cmp_ge_u32 s24, 2")
    p(f"s_cbranch_scc1 {name}_noslab3b")
    slab_out(3)
    p.label(name + "_noslab3b")
    if stamps:
        stamp_out()
    p.label(end)
    p("s_endpgm")
    code = kernel_header(name) + finalize(p)
    desc = kernel_desc(name, 256, 102, 128)
    return code, desc, 163840
```

```python
from asmlib import *
from layout import *
from gen_k2 import KA, srd, add64, kernel_header, kernel_desc

SLOT = 24576
U0 = 98304
M_STM = 65536
M_STR = 66560
M_CSB = 67072
M_E = 67584
M_CST = 69632
M_FLG = 70688
M_EJ = 70912
M_TB = 77824
M_CSW = U0
LOG2E = 1.4426950408889634
WS_CSP = WS_END
WS_CSP_BYTES = 16 * 16 * 128 * 4
WS_END2 = WS_CSP + WS_CSP_BYTES
M_ZERO = 94208
CFR = 100
STV = 126
WS, DBG, B1, W1, XB = 32, 36, 40, 44, 48


def f32(x):
    import struct
    return "0x%08x" % struct.unpack("<I", struct.pack("<f", x))[0]


def weave(slots, fill, per):
    out = []
    j = 0

    def add(items):
        for it in items:
            if isinstance(it, (list, tuple)):
                out.extend(it)
            else:
                out.append(it)
    for i, s in enumerate(slots):
        out += s
        k = per[i] if isinstance(per, (list, tuple)) else per
        add(fill[j:j + k])
        j += k
    add(fill[j:])
    return out


def gen_k1(name="k1_kernel", stamps=0, xcdmap=1, prefetch=True):
    p = Prog()
    end = name + "_end"
    stn = {"i": 1}

    def emit(lst):
        for t in lst:
            if t.startswith(";@"):
                p.raw(t)
            else:
                p(t)

    def stamp(level=1):
        if stamps >= level:
            p("s_memtime s[94:95]")
            p("s_waitcnt lgkmcnt(0)")
            p(f"v_writelane_b32 v{STV}, s94, {stn['i']}")
            stn["i"] += 1

    def bar(level=2):
        p("s_barrier")
        stamp(level)

    p("s_cmp_ge_u32 s2, 256")
    p(f"s_cbranch_scc1 {end}")
    if stamps:
        p("s_memtime s[80:81]")
        p("s_memrealtime s[90:91]")
    p(f"s_load_dwordx2 s[4:5], s[0:1], {KA['x']}")
    p(f"s_load_dwordx4 s[8:11], s[0:1], {KA['bre']}")
    p(f"s_load_dwordx4 s[16:19], s[0:1], {KA['w1']}")
    p(f"s_load_dwordx4 s[20:23], s[0:1], {KA['dbg']}")
    p(f"s_load_dwordx4 s[12:15], s[0:1], {KA['lre']}")
    p(f"s_load_dwordx2 s[6:7], s[0:1], {KA['ldt']}")
    p("v_lshrrev_b32 v1, 6, v0")
    p("s_and_b32 s25, s2, 7")
    p("v_readfirstlane_b32 s24, v1")
    p("v_and_b32 v1, 63, v0")
    p("s_lshr_b32 s26, s2, 3")
    if xcdmap == 0:
        p("s_lshr_b32 s27, s26, 4")
        p("s_lshl_b32 s25, s25, 1")
        p("s_add_u32 s27, s27, s25")
        p("s_and_b32 s28, s26, 15")
    else:
        p("s_lshr_b32 s27, s26, 3")
        p("s_lshr_b32 s28, s25, 1")
        p("s_lshl_b32 s28, s28, 2")
        p("s_add_u32 s27, s27, s28")
        p("s_and_b32 s28, s26, 7")
        p("s_and_b32 s53, s25, 1")
        p("s_lshl_b32 s53, s53, 3")
        p("s_add_u32 s28, s28, s53")
    p("s_lshr_b32 s29, s28, 2")
    p("s_mul_i32 s29, s29, 7")
    p("s_and_b32 s30, s28, 3")
    p("s_lshl_b32 s31, s30, 1")
    p("s_add_u32 s29, s29, s31")
    if stamps:
        p(f"v_mov_b32 v{STV}, 0")
        p("s_mov_b32 s92, s24")
    p("v_and_b32 v2, 31, v1")
    p("v_lshrrev_b32 v3, 5, v1")
    p("s_and_b32 s31, s24, 3")
    p("s_lshl_b32 s52, s31, 12")
    p("v_and_b32 v15, 7, v1")
    p("v_lshrrev_b32 v18, 4, v1")
    p("v_xor_b32 v15, v15, v18")
    p("v_lshlrev_b32 v15, 4, v15")
    p("v_lshrrev_b32 v18, 3, v1")
    p("s_lshl_b32 s56, s24, 10")
    p(f"s_mul_i32 s57, s24, {8*3584}")
    p("s_lshl_b32 s53, s29, 7")
    p("s_add_u32 s57, s57, s53")
    p("s_cmp_ge_u32 s24, 4")
    p(";@carry")
    p(f"s_cbranch_scc1 {name}_B")

    c0 = -2.0 * 0.7978845608028654 * LOG2E
    c1 = c0 * 0.044715

    def addrL(dst):
        p(f"v_bfe_u32 v{dst}, v2, 1, 3")
        p(f"v_xor_b32 v{dst}, v{dst}, v3")
        p(f"v_lshlrev_b32 v{dst}, 4, v{dst}")
        p(f"v_lshl_add_u32 v{dst}, v2, 7, v{dst}")

    def vW_calc(dst, t):
        p("s_movk_i32 s53, 3584")
        p(f"v_lshrrev_b32 v{dst}, 3, v1")
        p(f"v_mul_lo_u32 v{dst}, v{dst}, s53")
        p(f"v_bfe_u32 v{t}, v1, 4, 1")
        p(f"v_lshlrev_b32 v{t}, 2, v{t}")
        p(f"v_xor_b32 v{t}, v{t}, v1")
        p(f"v_and_b32 v{t}, 7, v{t}")
        p(f"v_lshl_add_u32 v{dst}, v{t}, 4, v{dst}")

    def udma(un, i, vw):
        base = U0 if un == 0 else 0
        return [f"s_add_u32 m0, s56, {base + 8192*i}",
                f"s_add_u32 s62, s57, {i*64*3584 + un*128}",
                f"buffer_load_dwordx4 v{vw}, s[{W1}:{W1+3}], s62 offen lds"]

    def slot_step(s, regs):
        out = []
        if s < 7:
            d = SLOT if (s % 4) != 3 else -3 * SLOT
            for r in regs:
                out.append(f"v_add_u32 v{r}, {d}, v{r}" if d > 0 else f"v_subrev_u32 v{r}, {-d}, v{r}")
        return out

    def ffn_setup():
        p("s_lshl_b32 s54, s31, 8")
        p(f"s_add_u32 s54, s54, {M_STM}")
        p("v_lshlrev_b32 v12, 3, v2")
        p("v_add_u32 v12, s54, v12")
        p("ds_read_b64 v[110:111], v12")
        p("v_bfe_u32 v13, v1, 2, 2")
        p("v_lshl_add_u32 v14, v3, 3, v13")
        p("v_lshlrev_b32 v14, 7, v14")
        p("v_bfe_u32 v15, v1, 4, 1")
        p("v_lshlrev_b32 v15, 1, v15")
        p("v_bfe_u32 v12, v1, 1, 1")
        p("v_add_u32 v15, v15, v12")
        p("v_lshrrev_b32 v12, 1, v13")
        p("v_lshl_add_u32 v15, v12, 2, v15")
        p("v_lshl_add_u32 v14, v15, 4, v14")
        p("v_and_b32 v12, 1, v1")
        p("v_lshl_add_u32 v6, v12, 3, v14")
        p("v_xor_b32 v7, 64, v6")
        p(f"v_add_u32 v4, {U0}, v6")
        p(f"v_add_u32 v5, {U0}, v7")
        p("v_lshlrev_b32 v9, 4, v1")
        p("v_mov_b32 v104, 0")
        p("v_mov_b32 v105, 0")
        p("v_mov_b32 v106, 0")
        p("v_mov_b32 v107, 0")
        p("v_rcp_f32 v108, v111")
        p("s_mov_b32 exec_hi, 0")
        p("v_cvt_pk_bf16_f32 v104, -v110, -v110")
        p("v_lshrrev_b32 v105, 16, v111")
        p("s_mov_b32 exec_hi, -1")
        p("v_mul_f32 v109, v108, v108")
        p("v_mul_f32 v109, v109, v108")
        p(f"v_mul_f32 v109, {f32(c1)}, v109")
        p(f"v_mul_f32 v108, {f32(c0)}, v108")
        p("v_mov_b32 v110, v111")
        p("s_lshl_b32 s60, s27, 1")
        p("s_lshr_b32 s61, s31, 1")
        p("s_add_u32 s60, s60, s61")
        p(f"s_mul_i32 s60, s60, {NSTEP*2048}")
        p("s_and_b32 s61, s31, 1")
        p("s_lshl_b32 s61, s61, 10")
        p("s_add_u32 s60, s60, s61")
        p(f"s_add_u32 s60, s60, {WS_H}")
        p("v_lshlrev_b32 v10, 3, v2")
        p(f"v_add_u32 v10, {M_CST}, v10")
        p("s_mov_b32 exec_lo, 0")
        p(f"v_mov_b32 v10, {M_ZERO}")
        p("s_mov_b32 exec_lo, -1")
        p(f"v_mov_b32 v{CFR+2}, 0")
        p(f"v_mov_b32 v{CFR+3}, 0")
        p("s_lshl_b32 s63, s29, 13")
        p("s_add_u32 s63, s63, s60")
        p(f"s_add_u32 s63, s63, {64*2048}")

    def poll(lab, masks, tmp=12, addr=8):
        p("s_lshl_b32 s55, s28, 4")
        p(f"v_mov_b32 v{addr}, s55")
        p("s_mov_b32 s62, 0")
        p.label(lab)
        p.nocount()
        p(f"buffer_load_dwordx4 v[{tmp}:{tmp+3}], v{addr}, s[{DBG}:{DBG+3}], 0 offen sc1")
        p("s_waitcnt vmcnt(0)")
        for k in range(4):
            p(f"v_readfirstlane_b32 s{96+k}, v{tmp+k}")
        for k in range(4):
            p(f"s_andn2_b32 s{96+k}, {masks[k]}, s{96+k}")
        p("s_or_b32 s96, s96, s97")
        p("s_or_b32 s98, s98, s99")
        p("s_or_b32 s96, s96, s98")
        p("s_cmp_eq_u32 s96, 0")
        p(f"s_cbranch_scc1 {lab}_done")
        p("s_add_u32 s62, s62, 1")
        p("s_cmp_gt_u32 s62, 100000")
        p(f"s_cbranch_scc1 {lab}_done")
        p("s_sleep 4")
        p(f"s_branch {lab}")
        p.label(lab + "_done")
    ALL1 = ["0x01010101"] * 4

    NB = 5

    def ffn_slots(ti, acc):
        areg = 4 + ti

        def rd(s):
            b = 80 + (s % NB) * 4
            return [f"ds_read_b64_tr_b16 v[{b}:{b+1}], v{areg} offset:{s*2048}",
                    f"ds_read_b64_tr_b16 v[{b+2}:{b+3}], v{areg} offset:{s*2048+512}"]
        pre = []
        for s in range(NB - 1):
            pre += rd(s)
        slots = []
        for s in range(32):
            sl = rd(s + NB - 1) if s + NB - 1 < 32 else []
            b = 80 + (s % NB) * 4
            c = "0" if s == 0 else f"v[{acc}:{acc+15}]"
            sl.append(f"v_mfma_f32_32x32x16_bf16 v[{acc}:{acc+15}], v[{b}:{b+3}], a[{4*s}:{4*s+3}], {c}")
            slots.append(sl)
        return pre, slots

    def ffn_corr(ti, cf):
        return [f"ds_read_b64 v[{cf}:{cf+1}], v10 offset:{ti*256}"]

    def ffn_corr_mfma(acc, cf):
        return [f"v_mfma_f32_32x32x16_bf16 v[{acc}:{acc+15}], v[{cf}:{cf+3}], v[104:107], v[{acc}:{acc+15}]"]

    def ffn_epi(ti, acc, tmp):
        out = []
        for g in range(4):
            js = range(4 * g, 4 * g + 4)
            for j in js: out.append(f"v_mul_f32 v{tmp+j}, v{acc+j}, v{acc+j}")
            for j in js: out.append(f"v_fma_f32 v{tmp+j}, v{tmp+j}, v109, v108")
            for j in js: out.append(f"v_mul_f32 v{tmp+j}, v{tmp+j}, v{acc+j}")
            for j in js: out.append(f"v_exp_f32 v{tmp+j}, v{tmp+j}")
            for j in js: out.append(f"v_fma_f32 v{tmp+j}, v{tmp+j}, v110, v110")
            for j in js: out.append(f"v_rcp_f32 v{tmp+j}, v{tmp+j}")
            for j in js: out.append(f"v_mul_f32 v{tmp+j}, v{tmp+j}, v{acc+j}")
            out.append(f"v_cvt_pk_bf16_f32 v{tmp+4*g}, v{tmp+4*g}, v{tmp+4*g+1}")
            out.append(f"v_cvt_pk_bf16_f32 v{tmp+4*g+1}, v{tmp+4*g+2}, v{tmp+4*g+3}")
            if g & 1:
                u = g >> 1
                out.append(f"v_mov_b32 v{tmp+8*u+2}, v{tmp+8*u+4}")
                out.append(f"v_mov_b32 v{tmp+8*u+3}, v{tmp+8*u+5}")
                out.append(f"s_add_u32 s61, s63, {(2*ti+u)*2048}")
                out.append(f"buffer_store_dwordx4 v[{tmp+8*u}:{tmp+8*u+3}], v9, s[{WS}:{WS+3}], s61 offen")
        return out

    def stamp_out():
        p("s_waitcnt vmcnt(0)")
        stamp()
        p(f"v_writelane_b32 v{STV}, s80, 0")
        p(f"v_writelane_b32 v{STV}, s90, 62")
        p("s_memrealtime s[90:91]")
        p("s_waitcnt lgkmcnt(0)")
        p(f"v_writelane_b32 v{STV}, s90, 63")
        p("s_lshl_b32 s19, s2, 3")
        p("s_add_u32 s19, s19, s92")
        p("s_lshl_b32 s19, s19, 8")
        p("s_add_u32 s19, s19, 0x4000000")
        add64(p, 72, 73, 22, 23, "s19")
        srd(p, 76, 72, 73, 256)
        p("v_lshlrev_b32 v72, 2, v1")
        p(f"buffer_store_dword v{STV}, v72, s[76:79], 0 offen")

    p("v_lshl_add_u32 v12, v18, 10, v15")
    p("v_xor_b32 v13, 64, v12")
    p("s_lshl_b32 s55, s28, 5")
    p("s_and_b32 s53, s24, 1")
    p("s_lshl_b32 s53, s53, 4")
    p("s_add_u32 s55, s55, s53")
    p("s_lshl_b32 s55, s55, 10")
    p("s_lshl_b32 s58, s24, 11")
    p("s_waitcnt lgkmcnt(0)")
    p("s_cmp_ge_u32 s24, 2")
    p(f"s_cselect_b32 s{XB}, s10, s8")
    p(f"s_cselect_b32 s{XB+1}, s11, s9")
    p(f"s_and_b32 s{XB+1}, s{XB+1}, 0xffff")
    p(f"s_mov_b32 s{XB+2}, 0x80000")
    p(f"s_mov_b32 s{XB+3}, 0x00020000")

    def a_dma(s, i):
        base = (s % 4) * SLOT
        return [f"s_add_u32 m0, s58, {base + 16384 + i*1024}",
                f"s_add_u32 s62, s55, {s*128 + i*8192}",
                f"buffer_load_dwordx4 v{12+i}, s[{XB}:{XB+3}], s62 offen lds"]
    for s_ in range(3):
        emit(a_dma(s_, 0) + a_dma(s_, 1)); p.mark(f"a{s_}")
    srd(p, 64, 12, 13, 1024)
    srd(p, 68, 14, 15, 1024)
    srd(p, 72, 6, 7, 1024)
    p("s_lshl_b32 s53, s28, 6")
    p("v_lshlrev_b32 v15, 1, v2")
    p("buffer_load_ushort v112, v15, s[64:67], s53 offen")
    p("buffer_load_ushort v113, v15, s[68:71], s53 offen")
    p("buffer_load_ushort v114, v15, s[72:75], s53 offen")
    srd(p, W1, 16, 17, 512 * 3584)
    if prefetch:
        srd(p, 76, 4, 5, 2048 * 1024)
        srd(p, 84, 8, 9, 512 * 1024)
        lab = name + "_pf"
        p("s_lshr_b32 s53, s25, 1")
        p("s_lshl_b32 s53, s53, 19")
        p("s_lshl_b32 s54, s26, 14")
        p("s_add_u32 s53, s53, s54")
        p("s_and_b32 s54, s25, 1")
        p("s_lshl_b32 s54, s54, 18")
        p("s_lshl_b32 s59, s26, 13")
        p("s_add_u32 s54, s54, s59")
        p("v_lshlrev_b32 v16, 7, v1")
        p("v_lshrrev_b32 v17, 2, v1")
        p("v_lshlrev_b32 v17, 10, v17")
        p("v_and_b32 v19, 3, v1")
        p("v_lshl_add_u32 v17, v19, 7, v17")
        p("v_add_u32 v17, 512, v17")
        p("v_lshrrev_b32 v19, 4, v1")
        p("s_movk_i32 s59, 3584")
        p("v_mul_lo_u32 v19, v19, s59")
        p("v_and_b32 v20, 15, v1")
        p("v_min_u32 v20, 13, v20")
        p("v_lshl_add_u32 v19, v20, 7, v19")
        p(f"s_mul_i32 s59, s26, {16*3584}")
        p("s_and_b32 s60, s25, 1")
        p("s_mul_i32 s60, s60, 1792")
        p("s_add_u32 s59, s59, s60")
        p("s_cmp_lg_u32 s31, 0")
        p(f"s_cbranch_scc1 {lab}1")
        p.nocount(); p("buffer_load_dword v127, v17, s[76:79], s53 offen")
        p.nocount(); p("buffer_load_dword v127, v16, s[84:87], s54 offen")
        p(";@carry"); p(f"s_branch {lab}_done")
        p(";@carry"); p.label(lab + "1")
        p("s_cmp_lg_u32 s31, 1")
        p(f"s_cbranch_scc1 {lab}2")
        srd(p, 84, 10, 11, 512 * 1024)
        p.nocount(); p("buffer_load_dword v127, v16, s[84:87], s54 offen")
        p.nocount(); p(f"buffer_load_dword v127, v19, s[{W1}:{W1+3}], s59 offen")
        p(";@carry"); p(f"s_branch {lab}_done")
        p(";@carry"); p.label(lab + "2")
        p("s_cmp_lg_u32 s31, 2")
        p(f"s_cbranch_scc1 {lab}3")
        p(f"s_add_u32 s59, s59, {4*3584}")
        p.nocount(); p(f"buffer_load_dword v127, v19, s[{W1}:{W1+3}], s59 offen")
        p(f"s_add_u32 s59, s59, {4*3584}")
        p.nocount(); p(f"buffer_load_dword v127, v19, s[{W1}:{W1+3}], s59 offen")
        p(";@carry"); p(f"s_branch {lab}_done")
        p(";@carry"); p.label(lab + "3")
        p(f"s_add_u32 s59, s59, {12*3584}")
        p.nocount(); p(f"buffer_load_dword v127, v19, s[{W1}:{W1+3}], s59 offen")
        p("v_add_u32 v17, -128, v17".replace("-128", "0xffffff80"))
        p.nocount(); p("buffer_load_dword v127, v17, s[76:79], s53 offen")
        p(";@carry"); p.label(lab + "_done")
    addrL(15)
    for u in range(4):
        p(f"v_xor_b32 v{8+u}, {32*u}, v15")
        p(f"v_add_u32 v{4+u}, s52, v{8+u}")
        p(f"v_add_u32 v{8+u}, 16384, v{8+u}")
    srd(p, WS, 22, 23, WS_END2)
    srd(p, DBG, 20, 21, 256)
    srd(p, B1, 18, 19, 3584)
    vW_calc(14, 15)
    A_RE, A_IM, A16_RE, A16_IM, A128_RE, A128_IM, AS_RE, AS_IM, C_RE, C_IM = 116, 117, 118, 119, 120, 121, 122, 123, 124, 125

    def ssm_params():
        o = []
        o += ["v_lshlrev_b32 v112, 16, v112", "v_lshlrev_b32 v113, 16, v113", "v_lshlrev_b32 v114, 16, v114",
              f"v_mul_f32 v114, {f32(LOG2E)}, v114", "v_exp_f32 v114, v114",
              "v_cvt_pk_bf16_f32 v114, v114, v114", "v_and_b32 v114, 0xffff0000, v114",
              "v_mul_f32 v115, v114, v112", "v_mul_f32 v127, v114, v113",
              f"v_mul_f32 v115, {f32(LOG2E)}, v115", f"v_mul_f32 v127, {f32(0.15915494309189535)}, v127"]

        def cpow(n_txt, dre, dim):
            return [f"v_mul_f32 v15, {n_txt}, v115", f"v_mul_f32 v{dim}, {n_txt}, v127", "v_exp_f32 v15, v15",
                    f"v_fract_f32 v{dim}, v{dim}", f"v_cos_f32 v{dre}, v{dim}", f"v_sin_f32 v{dim}, v{dim}",
                    f"v_mul_f32 v{dre}, v{dre}, v15", f"v_mul_f32 v{dim}, v{dim}, v15"]
        o += cpow("1.0", A_RE, A_IM)
        o += cpow(f32(16.0), A16_RE, A16_IM)
        o += cpow(f32(128.0), A128_RE, A128_IM)
        o += ["s_lshl_b32 s54, s31, 1", "v_add_u32 v114, s54, v3", "v_cvt_f32_u32 v114, v114",
              f"v_mul_f32 v114, {f32(16.0)}, v114"]
        o += cpow("v114", AS_RE, AS_IM)
        o += [f"v_add_f32 v114, -1.0, v{A_RE}", "v_mul_f32 v15, v112, v112", "v_fmac_f32 v15, v113, v113",
              "v_rcp_f32 v15, v15", "v_add_f32 v15, v15, v15",
              f"v_mul_f32 v{C_RE}, v114, v112", f"v_fmac_f32 v{C_RE}, v{A_IM}, v113",
              f"v_mul_f32 v{C_IM}, v{A_IM}, v112", f"v_fma_f32 v{C_IM}, -v114, v113, v{C_IM}",
              f"v_mul_f32 v{C_RE}, v{C_RE}, v15", f"v_mul_f32 v{C_IM}, v{C_IM}, v15"]
        return o

    def a_reads(s):
        bb = 48 + 32 * (s & 1)
        o = []
        for u in range(4):
            o.append(f"ds_read_b128 a[{16*s+4*u}:{16*s+4*u+3}], v{4+u}")
            o.append(f"ds_read_b128 v[{bb+8*u}:{bb+8*u+3}], v{8+u}")
            o.append(f"ds_read_b128 v[{bb+8*u+4}:{bb+8*u+7}], v{8+u} offset:4096")
        return o

    def a_mfma(s):
        bb = 48 + 32 * (s & 1)
        o = []
        for u in range(4):
            c0_ = "0" if (s == 0 and u == 0) else "v[16:31]"
            c1_ = "0" if (s == 0 and u == 0) else "v[32:47]"
            o.append(f"v_mfma_f32_32x32x16_bf16 v[16:31], a[{16*s+4*u}:{16*s+4*u+3}], v[{bb+8*u}:{bb+8*u+3}], {c0_}")
            o.append(f"v_mfma_f32_32x32x16_bf16 v[32:47], a[{16*s+4*u}:{16*s+4*u+3}], v[{bb+8*u+4}:{bb+8*u+7}], {c1_}")
        return o

    USCHED = {5: [(0, 0), (0, 1), (0, 2), (0, 3), (0, 4)],
              6: [(0, 5), (0, 6), (0, 7), (1, 0), (1, 1)],
              7: [(1, 2), (1, 3), (1, 4), (1, 5)],
              8: [(1, 6), (1, 7)]}
    lightskip = {"n": 0}

    def usched_emit(ep, vw, mf):
        d0 = [udma(u, i, vw) for (u, i) in USCHED[ep] if u == 0]
        d1 = [udma(u, i, vw) for (u, i) in USCHED[ep] if u == 1]
        mf = list(mf)
        for d in d0:
            if mf: p(mf.pop(0))
            if mf: p(mf.pop(0))
            emit(d)
        if ep == 6:
            p.mark("u0")
        for t in mf:
            p(t)
        for d in d1:
            emit(d)

    for s in range(8):
        p.waitvm(f"a{s}")
        bar()
        rd = a_reads(s)
        mf = a_mfma(s - 1) if s >= 1 else []
        st = slot_step(s, range(4, 12))
        if s == 0:
            emit(rd); emit(a_dma(3, 0) + a_dma(3, 1)); p.mark("a3"); emit(st)
        elif s <= 4:
            seq = []
            for k in range(4):
                seq += [mf[k]] + rd[3 * k:3 * k + 3]
            seq += [mf[4]] + a_dma(s + 3, 0) + [mf[5], mf[6]] + a_dma(s + 3, 1) + [mf[7]] + st
            emit(seq); p.mark(f"a{s+3}")
            if s == 2:
                emit(ssm_params())
        else:
            seq = []
            for k in range(4):
                seq += [mf[k]] + rd[3 * k:3 * k + 3]
            emit(seq + st)
            usched_emit(s, 14, mf[4:])
            if s == 7:
                emit(a_mfma(7))
    p("s_waitcnt lgkmcnt(0)")
    p.waitvm("u0")
    bar(1)
    p("v_and_b32 v12, 3, v1")
    p("v_lshlrev_b32 v12, 8, v12")
    p(f"v_add_u32 v12, {M_ZERO}, v12")
    p("v_mov_b32 v64, 0")
    p("v_mov_b32 v65, 0")
    p("ds_write_b64 v12, v[64:65]")
    p(f"v_mov_b32 v12, {M_FLG}")
    p("ds_write_b32 v12, v64")
    p("s_lshl_b32 s54, s31, 8")
    p(f"s_add_u32 s54, s54, {M_STM}")
    p("v_lshlrev_b32 v12, 3, v2")
    p("v_add_u32 v12, s54, v12")
    p("ds_read_b32 v48, v12")
    p("v_lshlrev_b32 v13, 2, v2")
    p(f"v_add_u32 v13, {M_CSB}, v13")
    p("ds_read_b32 v49, v13")
    p("ds_read_b32 v50, v13 offset:128")
    p("s_lshl_b32 s54, s31, 7")
    p(f"s_add_u32 s54, s54, {M_STR}")
    p("v_lshlrev_b32 v15, 6, v3")
    p("v_add_u32 v15, s54, v15")
    for i in range(4):
        p(f"ds_read_b128 v[{80+4*i}:{83+4*i}], v15 offset:{16*i}")
    for i in range(52, 64):
        p(f"v_mov_b32 v{i}, 0")
    p("v_cvt_pk_bf16_f32 v51, v49, v50")
    p("v_lshlrev_b32 v64, 16, v51")
    p("v_and_b32 v65, 0xffff0000, v51")
    p("v_sub_f32 v64, v49, v64")
    p("v_sub_f32 v65, v50, v65")
    p("s_mov_b32 exec_hi, 0")
    p("v_cvt_pk_bf16_f32 v52, -v48, -v48")
    p("v_cvt_pk_bf16_f32 v56, v49, v64")
    p("v_cvt_pk_bf16_f32 v60, v50, v65")
    p("s_mov_b32 exec_hi, -1")
    p("v_mfma_f32_32x32x16_bf16 v[16:31], v[52:55], v[56:59], v[16:31]")
    p("v_mfma_f32_32x32x16_bf16 v[32:47], v[52:55], v[60:63], v[32:47]")
    usched_emit(8, 14, [])
    p.mark("u1")
    for r in range(16):
        p(f"v_mul_f32 v{16+r}, v{16+r}, v{80+r}")
    for r in range(16):
        p(f"v_mul_f32 v{32+r}, v{32+r}, v{80+r}")

    def cstep(dre, dim, sre, sim, ar, ai, inre, inim):
        p(f"v_fma_f32 v{dre}, v{ar}, v{sre}, v{inre}")
        p(f"v_fma_f32 v{dim}, v{ar}, v{sim}, v{inim}")
        p(f"v_fma_f32 v{dre}, -v{ai}, v{sim}, v{dre}")
        p(f"v_fma_f32 v{dim}, v{ai}, v{sre}, v{dim}")
    cur = (16, 32)
    for r in range(1, 16):
        nxt = (96, 97) if r & 1 else (98, 99)
        cstep(nxt[0], nxt[1], cur[0], cur[1], A_RE, A_IM, 16 + r, 32 + r)
        cur = nxt
    p("s_lshl_b32 s54, s31, 1")
    p("v_add_u32 v100, s54, v3")
    p("v_lshlrev_b32 v13, 8, v100")
    p("v_lshl_add_u32 v13, v2, 3, v13")
    p(f"v_add_u32 v13, {M_E}, v13")
    p("ds_write_b64 v13, v[96:97]")
    p("s_waitcnt vmcnt(0) lgkmcnt(0)")
    bar(1)
    p("v_lshlrev_b32 v13, 3, v2")
    p(f"v_add_u32 v13, {M_E}, v13")
    for s in range(8):
        p(f"ds_read_b64 v[{48+2*s}:{49+2*s}], v13 offset:{256*s}")
    p("v_mov_b32 v112, 0")
    p("v_mov_b32 v113, 0")
    cur = (48, 49)
    for s in range(1, 8):
        p(f"v_cmp_eq_u32 vcc, {s}, v100")
        p(f"v_cndmask_b32 v112, v112, v{cur[0]}, vcc")
        p(f"v_cndmask_b32 v113, v113, v{cur[1]}, vcc")
        nxt = (96, 97) if s & 1 else (98, 99)
        cstep(nxt[0], nxt[1], cur[0], cur[1], A16_RE, A16_IM, 48 + 2 * s, 49 + 2 * s)
        cur = nxt
    skip = name + "_nopub"
    p("s_cmp_lg_u32 s24, 0")
    p(f"s_cbranch_scc1 {skip}")
    p("s_lshl_b32 s54, s27, 4")
    p("s_add_u32 s54, s54, s28")
    p("s_lshl_b32 s54, s54, 8")
    p(f"s_add_u32 s54, s54, {WS_E}")
    p("v_lshlrev_b32 v13, 3, v2")
    p("s_mov_b32 exec_hi, 0")
    p.nocount()
    p(f"buffer_store_dwordx2 v[96:97], v13, s[{WS}:{WS+3}], s54 offen sc1")
    p("s_waitcnt vmcnt(0)")
    p("s_mov_b64 exec, 1")
    p("v_mov_b32 v98, 3")
    p("s_lshl_b32 s55, s28, 4")
    p("s_add_u32 s55, s55, s27")
    p("v_mov_b32 v99, s55")
    p.nocount()
    p(f"buffer_store_byte v98, v99, s[{DBG}:{DBG+3}], 0 offen sc1")
    p("s_mov_b64 exec, -1")
    p.label(skip)
    stamp()
    ffn_setup()
    pre, slots = ffn_slots(1, 48)
    emit(pre)
    emit(weave(slots, ffn_corr(1, CFR), [0] * 24 + [1] * 8))
    emit(ffn_corr_mfma(48, CFR))
    stamp(3)
    emit(ffn_epi(1, 48, 64))
    stamp()
    p("s_lshl_b32 s54, s27, 3")
    p("s_mov_b64 s[68:69], 1")
    p("s_lshl_b64 s[68:69], s[68:69], s54")
    p("s_sub_u32 s68, s68, 1")
    p("s_subb_u32 s69, s69, 0")
    p("s_cmp_ge_u32 s27, 8")
    p("s_cselect_b32 s68, -1, s68")
    p("s_cselect_b32 s69, -1, s69")
    p("s_sub_u32 s54, s54, 64")
    p("s_mov_b64 s[70:71], 1")
    p("s_lshl_b64 s[70:71], s[70:71], s54")
    p("s_sub_u32 s70, s70, 1")
    p("s_subb_u32 s71, s71, 0")
    p("s_cmp_gt_u32 s27, 8")
    p("s_cselect_b32 s70, s70, 0")
    p("s_cselect_b32 s71, s71, 0")
    for k in range(4):
        p(f"s_and_b32 s{68+k}, s{68+k}, 0x02020202")
    waitl = name + "_waitl"
    p("s_cmp_lg_u32 s24, 3")
    p(f"s_cbranch_scc1 {waitl}")
    poll(name + "_pollE", ["s68", "s69", "s70", "s71"])
    p("v_lshrrev_b32 v12, 4, v1")
    p("v_and_b32 v13, 15, v1")
    p("v_lshlrev_b32 v14, 12, v12")
    p("v_lshl_add_u32 v14, v13, 4, v14")
    p("s_lshl_b32 s54, s28, 8")
    p(f"s_add_u32 s54, s54, {WS_E}")
    for i in range(4):
        p(f"buffer_load_dwordx4 v[{48+4*i}:{51+4*i}], v14, s[{WS}:{WS+3}], s54 offen sc1")
        p("s_add_u32 s54, s54, 16384")
    p("v_lshlrev_b32 v14, 8, v12")
    p("v_lshl_add_u32 v14, v13, 4, v14")
    p(f"v_add_u32 v14, {M_EJ}, v14")
    for i in range(4):
        p(f"ds_write_b128 v14, v[{48+4*i}:{51+4*i}] offset:{1024*i}")
    p(f"v_mov_b32 v12, {M_FLG}")
    p("v_mov_b32 v13, 1")
    p("s_waitcnt lgkmcnt(0)")
    p("ds_write_b32 v12, v13")
    p("s_waitcnt lgkmcnt(0)")
    p(f"s_branch {waitl}_done")
    p.label(waitl)
    p(f"v_mov_b32 v12, {M_FLG}")
    p("s_mov_b32 s62, 0")
    p.label(waitl + "_l")
    p("ds_read_b32 v13, v12")
    p("s_waitcnt lgkmcnt(0)")
    p("v_readfirstlane_b32 s55, v13")
    p("s_cmp_eq_u32 s55, 1")
    p(f"s_cbranch_scc1 {waitl}_done")
    p("s_add_u32 s62, s62, 1")
    p("s_cmp_gt_u32 s62, 2000000")
    p(f"s_cbranch_scc1 {waitl}_done")
    p("s_sleep 1")
    p(f"s_branch {waitl}_l")
    p.label(waitl + "_done")
    stamp()
    p("v_lshlrev_b32 v13, 3, v2")
    p(f"v_add_u32 v13, {M_EJ}, v13")
    for j in range(15):
        p(f"ds_read_b64 v[{48+2*j}:{49+2*j}], v13 offset:{256*j}")
    p("v_mov_b32 v96, 0")
    p("v_mov_b32 v97, 0")
    p("s_waitcnt lgkmcnt(0)")
    hdone = name + "_hdone"
    for j in range(15):
        p(f"s_cmp_le_u32 s27, {j}")
        p(f"s_cbranch_scc1 {hdone}")
        cstep(98, 99, 96, 97, A128_RE, A128_IM, 48 + 2 * j, 49 + 2 * j)
        p("v_mov_b32 v96, v98")
        p("v_mov_b32 v97, v99")
    p.label(hdone)
    cstep(98, 99, 96, 97, AS_RE, AS_IM, 112, 113)
    p("s_lshl_b32 s54, s31, 12")
    p(f"s_add_u32 s54, s54, {M_TB}")
    p("v_lshrrev_b32 v12, 2, v2")
    p("v_lshlrev_b32 v13, 1, v3")
    p("v_xor_b32 v12, v12, v13")
    p("v_and_b32 v13, 3, v2")
    p("v_lshlrev_b32 v13, 2, v13")
    p("v_lshl_add_u32 v13, v3, 9, v13")
    p("v_add_u32 v13, s54, v13")
    K0S = [0, 1, 4, 5]
    for i, k0 in enumerate(K0S):
        p(f"v_xor_b32 v14, {k0}, v12")
        p(f"v_lshl_add_u32 v{4+i}, v14, 4, v13")
    cur = (98, 99)
    for r in range(16):
        a, b = r >> 2, r & 3
        k0 = 4 * (a & 1) + (b >> 1)
        nxt = (96, 97) if (r & 1) == 0 else (98, 99)
        cstep(nxt[0], nxt[1], cur[0], cur[1], A_RE, A_IM, 16 + r, 32 + r)
        cur = nxt
        p(f"v_mul_f32 v84, v{C_RE}, v{cur[0]}")
        p(f"v_mul_f32 v85, v{C_RE}, v{cur[1]}")
        p(f"v_fma_f32 v84, -v{C_IM}, v{cur[1]}, v84")
        p(f"v_fma_f32 v85, v{C_IM}, v{cur[0]}, v85")
        p(f"v_cvt_pk_bf16_f32 v{48+r}, v84, -v85")
        p(f"ds_write_b32 v{4+K0S.index(k0)}, v{48+r} offset:{(8*a+b)*128}")
    addrL(12)
    p("v_add_u32 v12, s54, v12")
    p("s_waitcnt lgkmcnt(0)")
    for u in range(4):
        p(f"v_xor_b32 v13, {32*u}, v12")
        p(f"ds_read_b128 v[{64+4*u}:{67+4*u}], v13")
    p("s_lshl_b32 s61, s28, 13")
    p("s_add_u32 s61, s61, s60")
    for u in range(4):
        p(f"buffer_store_dwordx4 v[{64+4*u}:{67+4*u}], v9, s[{WS}:{WS+3}], s61 offen")
        p("s_add_u32 s61, s61, 2048")
    if stamps:
        stamp_out()
    p("s_endpgm")

    p(";@carry")
    p.label(name + "_B")
    stn["i"] = 1
    p("s_sub_u32 s24, s24, 4")
    p("v_lshlrev_b32 v19, 4, v3")
    p("v_bfe_u32 v20, v1, 3, 2")
    p("v_add_u32 v19, v19, v20")
    p("s_lshl_b32 s53, s24, 5")
    p("v_add_u32 v19, s53, v19")
    p("v_lshl_add_u32 v12, v19, 10, v15")
    p("v_xor_b32 v13, 64, v12")
    p("s_lshl_b32 s54, s27, 17")
    p("s_waitcnt lgkmcnt(0)")
    srd(p, XB, 4, 5, 2048 * 1024)

    def x_dma(s, i):
        base = (s % 4) * SLOT
        return [f"s_add_u32 m0, s52, {base + i*1024}",
                f"s_add_u32 s62, s54, {s*128 + i*4096}",
                f"buffer_load_dwordx4 v{12+(i&1)}, s[{XB}:{XB+3}], s62 offen lds"]

    def x_dmas(s):
        return [x_dma(s, i) for i in range(4)]
    for d in x_dmas(0): emit(d)
    p.mark("st0")
    srd(p, W1, 16, 17, 512 * 3584)
    p("s_movk_i32 s53, 3584")
    p("v_lshrrev_b32 v19, 4, v1")
    p("v_mul_lo_u32 v19, v19, s53")
    p("v_and_b32 v20, 15, v1")
    p("v_lshl_add_u32 v19, v20, 4, v19")
    p("s_lshl_b32 s59, s27, 5")
    p("s_lshl_b32 s60, s24, 3")
    p("s_add_u32 s59, s59, s60")
    p("s_mul_i32 s59, s59, 3584")
    p("s_lshl_b32 s60, s29, 7")
    p("s_add_u32 s59, s59, s60")
    p(f"buffer_load_dwordx4 v[96:99], v19, s[{W1}:{W1+3}], s59 offen")
    p(f"s_add_u32 s59, s59, {4*3584}")
    p(f"buffer_load_dwordx4 v[100:103], v19, s[{W1}:{W1+3}], s59 offen")
    for d in x_dmas(1): emit(d)
    p.mark("st1")
    for d in x_dmas(2): emit(d)
    p.mark("st2")
    srd(p, WS, 22, 23, WS_END2)
    srd(p, DBG, 20, 21, 256)
    srd(p, B1, 18, 19, 3584)
    vW_calc(14, 15)
    addrL(15)
    for u in range(4):
        p(f"v_xor_b32 v{4+u}, {32*u}, v15")
        p(f"v_add_u32 v{4+u}, s52, v{4+u}")
    p("v_and_b32 v19, 15, v1")
    p("v_lshrrev_b32 v20, 4, v1")
    p("v_bfe_u32 v15, v1, 1, 3")
    p("v_xor_b32 v20, v20, v15")
    p("v_lshlrev_b32 v20, 4, v20")
    p("v_lshl_add_u32 v20, v19, 7, v20")
    p("v_add_u32 v8, s52, v20")
    p("v_xor_b32 v9, 64, v8")
    p("s_lshl_b32 s59, s24, 11")
    p("s_add_u32 s59, s59, 16384")
    p("v_add_u32 v10, s59, v20")
    p("v_xor_b32 v11, 64, v10")
    for i in range(4):
        p(f"v_mov_b32 v{92+i}, 0x3f803f80")

    def b_reads(s):
        fb = 44 + 24 * (s & 1)
        o = [f"ds_read_b128 v[{fb}:{fb+3}], v8", f"ds_read_b128 v[{fb+4}:{fb+7}], v9",
             f"ds_read_b128 v[{fb+8}:{fb+11}], v8 offset:2048", f"ds_read_b128 v[{fb+12}:{fb+15}], v9 offset:2048",
             f"ds_read_b128 v[{fb+16}:{fb+19}], v10", f"ds_read_b128 v[{fb+20}:{fb+23}], v11"]
        for u in range(4):
            o.append(f"ds_read_b128 a[{16*s+4*u}:{16*s+4*u+3}], v{4+u}")
        return o

    def b_mfma(s):
        z = (s == 0)
        fb = 44 + 24 * (s & 1)
        M = "v_mfma_f32_16x16x32_bf16"
        f = lambda k: f"v[{fb+4*k}:{fb+4*k+3}]"
        O = "v[92:95]"
        return [
            f"{M} v[24:27], {f(0)}, {f(0)}, {'0' if z else 'v[24:27]'}",
            f"{M} v[28:31], {f(2)}, {f(2)}, {'0' if z else 'v[28:31]'}",
            f"{M} v[32:35], {f(0)}, {O}, {'0' if z else 'v[32:35]'}",
            f"{M} v[36:39], {f(2)}, {O}, {'0' if z else 'v[36:39]'}",
            f"{M} v[40:43], {f(4)}, {O}, {'0' if z else 'v[40:43]'}",
            f"{M} v[24:27], {f(1)}, {f(1)}, v[24:27]",
            f"{M} v[28:31], {f(3)}, {f(3)}, v[28:31]",
            f"{M} v[32:35], {f(1)}, {O}, v[32:35]",
            f"{M} v[36:39], {f(3)}, {O}, v[36:39]",
            f"{M} v[40:43], {f(5)}, {O}, v[40:43]",
        ]

    def b_epoch(s):
        emit(b_reads(s))
        mf = b_mfma(s - 1) if s >= 1 else []
        ds = x_dmas(s + 3) if s + 3 <= 7 else []
        for d in ds:
            emit(d)
            emit(mf[:2]); mf = mf[2:]
        if ds:
            p.mark(f"st{s+3}")
        emit(slot_step(s, range(4, 12)))
        return mf

    p.waitvm("st0", lgkm=False); bar()
    b_epoch(0)
    p.waitvm("st1"); bar()
    emit(b_epoch(1))
    for i in range(4):
        p(f"v_lshlrev_b32 v104, 16, v{96+i}")
        p(f"v_and_b32 v105, 0xffff0000, v{96+i}")
        p(f"v_lshlrev_b32 v106, 16, v{100+i}")
        p(f"v_and_b32 v107, 0xffff0000, v{100+i}")
        p(f"v_add_f32 v{96+i}, v104, v106")
        p(f"v_add_f32 v{100+i}, v105, v107")
    p("v_lshrrev_b32 v19, 4, v1")
    p("v_lshlrev_b32 v19, 9, v19")
    p("v_and_b32 v20, 15, v1")
    p("v_lshl_add_u32 v19, v20, 5, v19")
    p("s_lshl_b32 s59, s24, 11")
    p(f"s_add_u32 s59, s59, {M_CSW}")
    p("v_add_u32 v19, s59, v19")
    for i in range(4):
        p(f"ds_write2_b32 v19, v{96+i}, v{100+i} offset0:{2*i} offset1:{2*i+1}")
    p.waitvm("st2"); bar()
    p("s_lshl_b32 s59, s24, 7")
    p(f"s_add_u32 s59, s59, {M_CSW}")
    p("v_lshlrev_b32 v19, 12, v3")
    p("v_lshl_add_u32 v19, v2, 2, v19")
    p("v_add_u32 v19, s59, v19")
    for j in range(8):
        p(f"ds_read_b32 v{96+j}, v19 offset:{j*512}")
    emit(b_epoch(2))
    for j in range(1, 8):
        p(f"v_add_f32 v96, v96, v{96+j}")
    p("v_mov_b32 v97, v96")
    p("v_permlane32_swap_b32 v96, v97")
    p("v_add_f32 v96, v96, v97")
    p("s_lshl_b32 s59, s28, 4")
    p("s_add_u32 s59, s59, s27")
    p("s_lshl_b32 s59, s59, 9")
    p("s_lshl_b32 s60, s24, 7")
    p("s_add_u32 s59, s59, s60")
    p(f"s_add_u32 s59, s59, {WS_CSP}")
    p("v_lshlrev_b32 v19, 2, v2")
    p("s_mov_b32 exec_hi, 0")
    p(f"buffer_store_dword v96, v19, s[{WS}:{WS+3}], s59 offen sc1")
    p("s_mov_b32 exec_hi, -1")
    p.mark("csp")
    p.waitvm("st3"); bar()
    emit(b_epoch(3))
    p.waitvm("st4"); bar()
    emit(b_epoch(4))
    p.waitvm("csp"); bar()
    p("s_cmp_lg_u32 s24, 0")
    p(f"s_cbranch_scc1 {name}_nocsf")
    p("s_mov_b64 exec, 1")
    p("v_mov_b32 v96, 1")
    p("s_lshl_b32 s59, s28, 4")
    p("s_add_u32 s59, s59, s27")
    p("v_mov_b32 v97, s59")
    p.nocount()
    p(f"buffer_store_byte v96, v97, s[{DBG}:{DBG+3}], 0 offen sc1")
    p("s_mov_b64 exec, -1")
    p.label(name + "_nocsf")
    for s in (5, 6):
        emit(b_reads(s))
        emit(slot_step(s, range(4, 12)))
        if s == 6:
            p("s_lshl_b32 s55, s28, 4")
            p("v_mov_b32 v108, s55")
            p(f"buffer_load_dwordx4 v[104:107], v108, s[{DBG}:{DBG+3}], 0 offen sc1")
        usched_emit(s, 14, b_mfma(s - 1))
        p.waitvm(f"st{s+1}"); bar()
    for k in range(4):
        p(f"v_readfirstlane_b32 s{96+k}, v{104+k}")
    p("s_and_b32 s96, s96, s97")
    p("s_and_b32 s98, s98, s99")
    p("s_and_b32 s96, s96, s98")
    p("s_and_b32 s96, s96, 0x01010101")
    p("s_cmp_eq_u32 s96, 0x01010101")
    p(";@carry")
    p(f"s_cbranch_scc1 {name}_csok")
    poll(name + "_pollcB", ALL1, tmp=104, addr=108)
    p(";@carry")
    p.label(name + "_csok")
    emit(b_reads(7))
    p("v_lshrrev_b32 v19, 3, v1")
    p("v_and_b32 v20, 7, v1")
    p("v_lshlrev_b32 v21, 9, v19")
    p("v_lshl_add_u32 v21, v20, 4, v21")
    p("s_lshl_b32 s59, s28, 13")
    p("s_lshl_b32 s60, s24, 7")
    p("s_add_u32 s59, s59, s60")
    p(f"s_add_u32 s59, s59, {WS_CSP}")
    p(f"buffer_load_dwordx4 v[112:115], v21, s[{WS}:{WS+3}], s59 offen sc1")
    p("s_add_u32 s59, s59, 4096")
    p(f"buffer_load_dwordx4 v[116:119], v21, s[{WS}:{WS+3}], s59 offen sc1")
    p("s_lshl_b32 s59, s29, 7")
    p("s_lshl_b32 s60, s24, 6")
    p("s_add_u32 s59, s59, s60")
    p("v_lshlrev_b32 v21, 3, v20")
    p(f"buffer_load_dwordx2 v[120:121], v21, s[{B1}:{B1+3}], s59 offen")
    usched_emit(7, 14, b_mfma(6))
    emit(b_mfma(7))
    p("v_and_b32 v19, 3, v1")
    p("v_cmp_eq_u32 s[76:77], 1, v19")
    p("v_cmp_eq_u32 s[78:79], 2, v19")
    p("v_cmp_eq_u32 s[82:83], 3, v19")
    for (base, dst) in ((24, 96), (28, 97), (32, 98), (36, 99)):
        p(f"v_cndmask_b32 v{dst}, v{base}, v{base+1}, s[76:77]")
        p(f"v_cndmask_b32 v{dst}, v{dst}, v{base+2}, s[78:79]")
        p(f"v_cndmask_b32 v{dst}, v{dst}, v{base+3}, s[82:83]")
    for rt in range(2):
        q, sm = 96 + rt, 98 + rt
        p(f"v_mul_f32 v{sm}, 0x3b000000, v{sm}")
        p(f"v_mul_f32 v{q}, 0x3b000000, v{q}")
        p(f"v_fma_f32 v{q}, -v{sm}, v{sm}, v{q}")
        p(f"v_max_f32 v{q}, 0, v{q}")
        p(f"v_cvt_pk_bf16_f32 v{sm}, v{sm}, v{q}")
        p(f"v_and_b32 v{q}, 0xffff0000, v{sm}")
        p(f"v_lshlrev_b32 v{sm}, 16, v{sm}")
        p(f"v_add_f32 v{q}, 0x3727c5ac, v{q}")
        p(f"v_cvt_pk_bf16_f32 v{q}, v{q}, v{q}")
        p(f"v_and_b32 v{q}, 0xffff0000, v{q}")
        p(f"v_sqrt_f32 v{q}, v{q}")
        p(f"v_cvt_pk_bf16_f32 v{q}, v{q}, v{q}")
        p(f"v_and_b32 v{q}, 0xffff0000, v{q}")
        p(f"v_rcp_f32 v{100+rt}, v{q}")
    p("v_lshrrev_b32 v19, 4, v1")
    p("v_bfe_u32 v20, v1, 2, 2")
    p("v_cmp_eq_u32 vcc, v19, v20")
    p("s_and_saveexec_b64 s[70:71], vcc")
    p("v_and_b32 v19, 15, v1")
    p("s_lshl_b32 s59, s24, 8")
    p(f"s_add_u32 s59, s59, {M_STM}")
    p("v_lshlrev_b32 v20, 3, v19")
    p("v_add_u32 v20, s59, v20")
    p("v_mov_b32 v102, v98"); p("v_mov_b32 v103, v96")
    p("v_mov_b32 v104, v99"); p("v_mov_b32 v105, v97")
    p("ds_write_b64 v20, v[102:103]")
    p("ds_write_b64 v20, v[104:105] offset:128")
    p("v_bfe_u32 v20, v19, 2, 1")
    p("v_lshlrev_b32 v20, 4, v20")
    p("v_lshrrev_b32 v21, 3, v19")
    p("v_lshl_add_u32 v20, v21, 2, v20")
    p("v_and_b32 v21, 3, v19")
    p("v_add_u32 v20, v20, v21")
    p("s_lshl_b32 s59, s24, 7")
    p(f"s_add_u32 s59, s59, {M_STR}")
    p("v_lshlrev_b32 v21, 2, v20")
    p("v_add_u32 v21, s59, v21")
    p("ds_write_b32 v21, v100")
    p("ds_write_b32 v21, v101 offset:32")
    p("s_cmp_lg_u32 s28, 0")
    p(";@carry")
    p(f"s_cbranch_scc1 {name}_nogst")
    p("v_mov_b32 v103, v100")
    p("v_mov_b32 v105, v101")
    p("s_lshl_b32 s59, s27, 10")
    p("s_lshl_b32 s60, s24, 8")
    p("s_add_u32 s59, s59, s60")
    p(f"s_add_u32 s59, s59, {WS_STATS}")
    p("v_lshlrev_b32 v21, 3, v20")
    p.nocount()
    p(f"buffer_store_dwordx2 v[102:103], v21, s[{WS}:{WS+3}], s59 offen")
    p.nocount()
    p(f"buffer_store_dwordx2 v[104:105], v21, s[{WS}:{WS+3}], s59 offen offset:64")
    p(";@carry")
    p.label(name + "_nogst")
    p("s_mov_b64 exec, s[70:71]")
    p("v_and_b32 v19, 15, v1")
    p("v_cmp_eq_u32 vcc, 0, v19")
    p("s_and_saveexec_b64 s[70:71], vcc")
    p("v_and_b32 v19, 48, v1")
    p("s_lshl_b32 s59, s24, 6")
    p(f"s_add_u32 s59, s59, {M_CSB}")
    p("v_add_u32 v19, s59, v19")
    p("ds_write_b128 v19, v[40:43]")
    p("s_mov_b64 exec, s[70:71]")
    p("s_waitcnt lgkmcnt(0)")
    p.waitvm("u0")
    bar(1)
    usched_emit(8, 14, [])
    ffn_setup()
    lightB = name + "_lightB"
    CF = CFR
    tb = []
    for i in range(4):
        tb.append(f"v_add_f32 v{112+i}, v{112+i}, v{116+i}")
    for i in range(4):
        tb.append(f"v_add_f32_dpp v{112+i}, v{112+i}, v{112+i} row_ror:8 row_mask:0xf bank_mask:0xf")
    for sw in ("v_permlane16_swap_b32", "v_permlane32_swap_b32"):
        for i in range(4):
            tb.append(f"v_mov_b32 v{116+i}, v{112+i}")
        for i in range(4):
            tb.append(f"{sw} v{112+i}, v{116+i}")
        for i in range(4):
            tb.append(f"v_add_f32 v{112+i}, v{112+i}, v{116+i}")
    for i in range(4):
        tb += [f"v_cvt_pk_bf16_f32 v{116+i}, v{112+i}, v{112+i}", f"v_and_b32 v{116+i}, 0xffff0000, v{116+i}",
               f"v_sub_f32 v{116+i}, v{112+i}, v{116+i}", f"v_cvt_pk_bf16_f32 v{16+2*i}, v{112+i}, v{116+i}"]
    tb += ["v_and_b32 v17, 0xffff, v120", "v_lshrrev_b32 v19, 16, v120", "v_and_b32 v21, 0xffff, v121", "v_lshrrev_b32 v23, 16, v121",
           "v_and_b32 v24, 7, v1", "v_lshlrev_b32 v24, 5, v24", "s_lshl_b32 s59, s24, 8", f"s_add_u32 s59, s59, {M_CST}",
           "v_add_u32 v24, s59, v24",
           ["s_mov_b64 exec, 0xff", "ds_write_b128 v24, v[16:19]", "ds_write_b128 v24, v[20:23] offset:16", "s_mov_b64 exec, -1"]]
    pre, slots = ffn_slots(0, 48)
    emit(pre)
    seq = weave(slots[:18], tb, 4)
    emit(seq)
    p("s_waitcnt vmcnt(0) lgkmcnt(0)")
    bar(1)
    emit(weave(slots[18:], ffn_corr(0, CF), [0] * 8 + [1] * 6))
    emit(ffn_corr_mfma(48, CF))
    stamp()
    p("s_cmp_eq_u32 s30, 3")
    p(f"s_cbranch_scc1 {lightB}")
    pre, slots = ffn_slots(2, 64)
    emit(pre)
    fill = ffn_epi(0, 48, 16) + ffn_corr(2, CF)
    emit(weave(slots, fill, 5))
    emit(ffn_corr_mfma(64, CF))
    stamp()
    pre, slots = ffn_slots(3, 48)
    emit(pre)
    fill = ffn_epi(2, 64, 16) + ffn_corr(3, CF)
    emit(weave(slots, fill, 5))
    emit(ffn_corr_mfma(48, CF))
    stamp()
    emit(ffn_epi(3, 48, 16))
    if stamps:
        stamp_out()
    p("s_endpgm")
    p.label(lightB)
    stn["i"] = 4 if stamps == 1 else 12
    emit(ffn_epi(0, 48, 16))
    stamp()
    p(f"s_load_dwordx4 s[4:7], s[0:1], {KA['cre']}")
    p(f"s_load_dwordx2 s[8:9], s[0:1], {KA['w2']}")
    p("s_lshl_b32 s70, s27, 2")
    p("s_lshr_b32 s71, s28, 2")
    p("s_add_u32 s70, s70, s71")
    p("s_waitcnt lgkmcnt(0)")
    srd(p, 64, 4, 5, 512 * 1024)
    srd(p, 84, 6, 7, 512 * 1024)
    srd(p, W1, 8, 9, 1792 * 1024)
    p("v_lshrrev_b32 v13, 3, v1")
    p("v_bfe_u32 v14, v1, 4, 1")
    p("v_lshlrev_b32 v14, 2, v14")
    p("v_and_b32 v15, 7, v1")
    p("v_xor_b32 v14, v14, v15")
    p("v_lshlrev_b32 v14, 4, v14")
    p("v_lshl_add_u32 v16, v13, 10, v14")
    p("v_bfe_u32 v13, v1, 2, 2")
    p("v_lshl_add_u32 v14, v3, 2, v13")
    p("v_lshlrev_b32 v14, 7, v14")
    p("v_bfe_u32 v15, v1, 4, 1")
    p("v_lshlrev_b32 v15, 1, v15")
    p("v_bfe_u32 v12, v1, 1, 1")
    p("v_add_u32 v15, v15, v12")
    p("v_lshrrev_b32 v12, 1, v13")
    p("v_lshl_add_u32 v15, v12, 2, v15")
    p("v_lshl_add_u32 v14, v15, 4, v14")
    p("v_and_b32 v12, 1, v1")
    p("v_lshl_add_u32 v17, v12, 3, v14")
    p("s_lshl_b32 s71, s24, 13")
    p("v_add_u32 v17, s71, v17")
    p("v_xor_b32 v18, 64, v17")
    p("v_lshlrev_b32 v13, 10, v2")
    p("v_lshl_add_u32 v13, v3, 3, v13")
    p("s_mov_b32 s76, 0x05040100")
    p("s_mov_b32 s77, 0x07060302")

    def slab_ids(i):
        p(f"s_add_u32 s72, s24, {4*i}")
        p("s_mul_i32 s73, s70, 14")
        p("s_add_u32 s72, s72, s73")
        p("s_lshr_b32 s73, s72, 3")
        p("s_and_b32 s74, s72, 7")

    def slab_dma(i):
        slab_ids(i)
        p("s_lshl_b32 s75, s73, 14")
        p("s_lshl_b32 s78, s74, 7")
        p("s_add_u32 s75, s75, s78")
        for q in range(2):
            p(f"s_add_u32 m0, s71, {i*2048 + q*1024}")
            p(f"s_add_u32 s62, s75, {q*8192}")
            p("buffer_load_dwordx4 v16, s[44:47], s62 offen lds")

    def slab_out(i):
        slab_ids(i)
        for dt in range(2):
            b = 88 + 4 * dt
            p(f"ds_read_b64_tr_b16 v[{b}:{b+1}], v{17+dt} offset:{i*2048}")
            p(f"ds_read_b64_tr_b16 v[{b+2}:{b+3}], v{17+dt} offset:{i*2048+1024}")
        p(f"s_mul_i32 s75, s74, {NSTEP}")
        p("s_add_u32 s75, s75, s73")
        p("s_add_u32 s75, s75, 64")
        p("s_lshl_b32 s75, s75, 11")
        p(f"s_add_u32 s75, s75, {WS_WC}")
        p(f"buffer_store_dwordx4 v[88:91], v9, s[{WS}:{WS+3}], s75 offen")
        p(f"buffer_store_dwordx4 v[92:95], v9, s[{WS}:{WS+3}], s75 offen offset:1024")
    for i in range(3):
        slab_dma(i)
    p("s_cmp_ge_u32 s24, 2")
    p(";@carry")
    p(f"s_cbranch_scc1 {name}_noslab3")
    slab_dma(3)
    p(";@carry")
    p.label(name + "_noslab3")
    SO = [64 + 0, 0, 0, 0]
    for i in range(4):
        p("s_lshl_b32 s72, s70, 4")
        p("s_lshl_b32 s73, s24, 2")
        p("s_add_u32 s72, s72, s73")
        p(f"s_add_u32 s72, s72, {i}")
        p("s_lshr_b32 s73, s72, 7")
        p("s_bfe_u32 s74, s72, 0x60001")
        p("s_and_b32 s75, s72, 1")
        p("s_lshl_b32 s78, s73, 6")
        p("s_lshl_b32 s79, s75, 5")
        p("s_add_u32 s78, s78, s79")
        p("s_lshl_b32 s78, s78, 10")
        p("s_lshl_b32 s79, s74, 4")
        p("s_add_u32 s78, s78, s79")
        b = 56 + 8 * i
        p(f"buffer_load_dwordx2 v[{b}:{b+1}], v13, s[64:67], s78 offen")
        p(f"buffer_load_dwordx2 v[{b+2}:{b+3}], v13, s[84:87], s78 offen")
        p(f"s_mul_i32 s78, s73, {NSTEP}")
        p("s_add_u32 s78, s78, s74")
        p("s_lshl_b32 s78, s78, 1")
        p("s_add_u32 s78, s78, s75")
        p("s_lshl_b32 s78, s78, 10")
        p(f"s_add_u32 s{10+i}, s78, {WS_WC}")
    p("s_waitcnt vmcnt(8)")
    for i in range(3):
        slab_out(i)
    p("s_cmp_ge_u32 s24, 2")
    p(";@carry")
    p(f"s_cbranch_scc1 {name}_noslab3b")
    slab_out(3)
    p(";@carry")
    p.label(name + "_noslab3b")
    p("s_waitcnt vmcnt(0)")
    for i in range(4):
        b = 56 + 8 * i
        p(f"v_perm_b32 v{b+4}, v{b+2}, v{b}, s76")
        p(f"v_perm_b32 v{b+5}, v{b+2}, v{b}, s77")
        p(f"v_perm_b32 v{b+6}, v{b+3}, v{b+1}, s76")
        p(f"v_perm_b32 v{b+7}, v{b+3}, v{b+1}, s77")
        p(f"buffer_store_dwordx4 v[{b+4}:{b+7}], v9, s[{WS}:{WS+3}], s{10+i} offen")
    if stamps:
        stamp_out()
    p.label(end)
    p("s_endpgm")
    code = kernel_header(name) + finalize(p)
    desc = kernel_desc(name, 256, 102, 128)
    return code, desc, 163840
```

```python
from asmlib import *
from layout import *
from gen_k2 import KA, srd, add64, kernel_header, kernel_desc


def gen_k2(name="k2_kernel", DEPTH=8, NW=8, stamps=False, loop=False, xcdmap=1):
    p = Prog()
    STEPS = NSTEP // NW
    RPW = 64 // NW
    NQ = RPW // 4
    end = name + "_end"
    p("s_cmp_ge_u32 s2, 256")
    p(f"s_cbranch_scc1 {end}")
    if stamps:
        p("s_memtime s[60:61]")
        p("s_memrealtime s[62:63]")
    p(f"s_load_dwordx2 s[12:13], s[0:1], {KA['ws']}")
    p(f"s_load_dwordx2 s[4:5], s[0:1], {KA['x']}")
    p(f"s_load_dwordx2 s[6:7], s[0:1], {KA['dsk']}")
    p(f"s_load_dwordx4 s[8:11], s[0:1], {KA['b2']}")
    p("v_lshrrev_b32 v1, 6, v0")
    p("v_and_b32 v2, 63, v0")
    p("v_readfirstlane_b32 s14, v1")
    p("s_and_b32 s15, s2, 7")
    p("s_lshr_b32 s16, s2, 3")
    if xcdmap == 0:
        p("s_lshr_b32 s17, s16, 3")
        p("s_lshl_b32 s15, s15, 2")
        p("s_add_u32 s17, s17, s15")
        p("s_and_b32 s18, s16, 7")
    else:
        p("s_lshr_b32 s17, s16, 2")
        p("s_lshr_b32 s18, s15, 1")
        p("s_lshl_b32 s18, s18, 3")
        p("s_add_u32 s17, s17, s18")
        p("s_and_b32 s18, s16, 3")
        p("s_and_b32 s15, s15, 1")
        p("s_lshl_b32 s15, s15, 2")
        p("s_add_u32 s18, s18, s15")
    p("v_lshlrev_b32 v3, 4, v2")
    p(f"s_mul_i32 s53, s14, {STEPS*2048}")
    p(f"s_mul_i32 s19, s17, {NSTEP*2048}")
    p(f"s_add_u32 s19, s19, {WS_H}")
    p(f"s_mul_i32 s50, s18, {NSTEP*2048}")
    p(f"s_add_u32 s50, s50, {WS_WC}")
    p("s_waitcnt lgkmcnt(0)")
    add64(p, 48, 49, 12, 13, "s19")
    srd(p, 20, 48, 49, NSTEP * 2048)
    add64(p, 48, 49, 12, 13, "s50")
    srd(p, 24, 48, 49, NSTEP * 2048)
    FB = 64

    def slot(st, i):
        b = FB + (st % DEPTH) * 16 + i * 4
        return f"v[{b}:{b+3}]"

    def loads(st):
        off = (st & 1) * 2048
        p(f"buffer_load_dwordx4 {slot(st,0)}, v3, s[20:23], s53 offen offset:{off}")
        p(f"buffer_load_dwordx4 {slot(st,2)}, v3, s[24:27], s53 offen offset:{off}")
        p(f"buffer_load_dwordx4 {slot(st,1)}, v3, s[20:23], s53 offen offset:{off+1024}")
        p(f"buffer_load_dwordx4 {slot(st,3)}, v3, s[24:27], s53 offen offset:{off+1024}")
        if st & 1:
            p("s_add_u32 s53, s53, 4096")
    for st in range(min(DEPTH, STEPS)):
        loads(st)
    p("s_lshl_b32 s19, s17, 16")
    p("s_lshl_b32 s50, s18, 7")
    p("s_add_u32 s19, s19, s50")
    add64(p, 48, 49, 4, 5, "s19")
    srd(p, 28, 48, 49, 65536)
    p("s_sub_u32 s30, 65536, s50")
    p("s_lshl_b32 s19, s17, 9")
    p(f"s_add_u32 s19, s19, {WS_STATS}")
    add64(p, 48, 49, 12, 13, "s19")
    srd(p, 32, 48, 49, 512)
    add64(p, 48, 49, 6, 7, "s50")
    srd(p, 36, 48, 49, 128)
    add64(p, 48, 49, 8, 9, "s50")
    srd(p, 40, 48, 49, 128)
    p("s_lshl_b32 s19, s17, 17")
    p("s_lshl_b32 s51, s18, 8")
    p("s_add_u32 s19, s19, s51")
    add64(p, 48, 49, 10, 11, "s19")
    srd(p, 44, 48, 49, 131072)
    p("s_sub_u32 s46, 131072, s51")
    p("v_lshrrev_b32 v4, 4, v2")
    p("v_and_b32 v5, 15, v2")
    p(f"s_mul_i32 s52, s14, {RPW}")
    p("v_add_u32 v6, s52, v4")
    p("v_lshlrev_b32 v7, 10, v6")
    p("v_lshl_add_u32 v7, v5, 3, v7")
    p("v_lshlrev_b32 v8, 3, v6")
    p("v_lshlrev_b32 v9, 3, v5")
    p("v_lshlrev_b32 v10, 11, v6")
    p("v_lshl_add_u32 v10, v5, 4, v10")
    for q in range(NQ):
        p(f"s_mov_b32 s54, {q*4096}")
        p(f"buffer_load_dwordx2 v[{12+2*q}:{13+2*q}], v7, s[28:31], s54 offen")
        p(f"buffer_load_dwordx2 v[{20+2*q}:{21+2*q}], v8, s[32:35], 0 offen offset:{q*32}")
    p("buffer_load_dwordx2 v[28:29], v9, s[36:39], 0 offen")
    p("buffer_load_dwordx2 v[30:31], v9, s[40:43], 0 offen")
    p("v_and_b32 v50, 31, v2")
    p("v_lshrrev_b32 v51, 5, v2")
    p("v_bfe_u32 v52, v50, 2, 1")
    p("v_lshlrev_b32 v53, 4, v52")
    p("v_lshrrev_b32 v54, 3, v50")
    p("v_lshl_add_u32 v53, v54, 2, v53")
    p("v_and_b32 v54, 3, v50")
    p("v_add_u32 v53, v53, v54")
    p("v_lshl_add_u32 v54, v52, 2, v54")
    p("s_lshl_b32 s55, s14, 14")
    p("v_lshlrev_b32 v53, 8, v53")
    p("v_add_u32 v53, s55, v53")
    for a in range(4):
        p(f"v_add_u32 v55, {2*a}, v51")
        p("v_xor_b32 v55, v55, v54")
        p(f"v_lshl_add_u32 v{56+a}, v55, 4, v53")
    if NW == 4:
        p("s_and_b32 s56, s14, 1")
    else:
        p("s_bfe_u32 s56, s14, 0x10001")
    p("s_lshl_b32 s56, s56, 2")
    p("v_or_b32 v55, s56, v4")
    p("v_xor_b32 v55, v55, v5")
    p("v_lshlrev_b32 v60, 8, v6")
    p("v_lshl_add_u32 v60, v55, 4, v60")
    p("v_add_u32 v61, 0x10000, v60")

    def base_calc():
        DK = [48, 49, 50, 51]
        B2 = [52, 53, 54, 55]
        p("v_lshlrev_b32 v48, 16, v28")
        p("v_and_b32 v49, 0xffff0000, v28")
        p("v_lshlrev_b32 v50, 16, v29")
        p("v_and_b32 v51, 0xffff0000, v29")
        p("v_lshlrev_b32 v52, 16, v30")
        p("v_and_b32 v53, 0xffff0000, v30")
        p("v_lshlrev_b32 v54, 16, v31")
        p("v_and_b32 v55, 0xffff0000, v31")
        for q in range(NQ):
            xr = [32 + 4 * q + i for i in range(4)]
            m_, rs = 20 + 2 * q, 21 + 2 * q
            t = [28, 29, 30, 31]
            p(f"v_lshlrev_b32 v{xr[0]}, 16, v{12+2*q}")
            p(f"v_and_b32 v{xr[1]}, 0xffff0000, v{12+2*q}")
            p(f"v_lshlrev_b32 v{xr[2]}, 16, v{13+2*q}")
            p(f"v_and_b32 v{xr[3]}, 0xffff0000, v{13+2*q}")
            for i in range(4):
                p(f"v_sub_f32 v{t[i]}, v{xr[i]}, v{m_}")

            def rnd():
                p(f"v_cvt_pk_bf16_f32 v62, v{t[0]}, v{t[1]}")
                p(f"v_cvt_pk_bf16_f32 v63, v{t[2]}, v{t[3]}")
                p(f"v_lshlrev_b32 v{t[0]}, 16, v62")
                p(f"v_and_b32 v{t[1]}, 0xffff0000, v62")
                p(f"v_lshlrev_b32 v{t[2]}, 16, v63")
                p(f"v_and_b32 v{t[3]}, 0xffff0000, v63")
            rnd()
            for i in range(4):
                p(f"v_mul_f32 v{t[i]}, v{t[i]}, v{rs}")
            rnd()
            for i in range(4):
                p(f"v_mul_f32 v{t[i]}, v{t[i]}, v{DK[i]}")
            rnd()
            for i in range(4):
                p(f"v_add_f32 v{xr[i]}, v{xr[i]}, v{t[i]}")
                p(f"v_add_f32 v{xr[i]}, v{xr[i]}, v{B2[i]}")
    if loop:
        assert STEPS % DEPTH == 0 and DEPTH % 2 == 0
        base_calc()
        for i in range(64):
            p(f"v_accvgpr_write_b32 a{i}, 0")
        if stamps:
            p("s_memtime s[64:65]")
        p(f"s_mov_b32 s57, {STEPS // DEPTH}")
        p("s_waitcnt lgkmcnt(0)")
        p(";@carry")
        p.label(name + "_loop")
        for st in range(DEPTH):
            p.raw(f"s_waitcnt vmcnt({4*(DEPTH-1)})")
            for dt in range(2):
                for rt in range(2):
                    acc = (dt * 2 + rt) * 16
                    p.raw(f"v_mfma_f32_32x32x16_bf16 a[{acc}:{acc+15}], {slot(st,2+dt)}, {slot(st,rt)}, a[{acc}:{acc+15}]")
            off = (st & 1) * 2048
            p.raw(f"buffer_load_dwordx4 {slot(st,0)}, v3, s[20:23], s53 offen offset:{off}")
            p.raw(f"buffer_load_dwordx4 {slot(st,2)}, v3, s[24:27], s53 offen offset:{off}")
            p.raw(f"buffer_load_dwordx4 {slot(st,1)}, v3, s[20:23], s53 offen offset:{off+1024}")
            p.raw(f"buffer_load_dwordx4 {slot(st,3)}, v3, s[24:27], s53 offen offset:{off+1024}")
            if st & 1:
                p.raw("s_add_u32 s53, s53, 4096")
        p.raw("s_sub_u32 s57, s57, 1")
        p.raw("s_cmp_lg_u32 s57, 0")
        p.raw(f"s_cbranch_scc1 {name}_loop")
        p.raw("s_nop 15")
        p.raw("s_waitcnt vmcnt(0)")
    else:
      for st in range(STEPS):
        for dt in range(2):
            for rt in range(2):
                acc = (dt * 2 + rt) * 16
                c = "0" if st == 0 else f"a[{acc}:{acc+15}]"
                p(f"v_mfma_f32_32x32x16_bf16 a[{acc}:{acc+15}], {slot(st,2+dt)}, {slot(st,rt)}, {c}")
        if stamps and st == 0:
            p("s_memtime s[64:65]")
        if st + DEPTH < STEPS:
            loads(st + DEPTH)
        if st == STEPS - DEPTH:
            base_calc()
    if stamps:
        p("s_memtime s[66:67]")
    for dt in range(2):
        for rt in range(2):
            acc = (dt * 2 + rt) * 16
            for a in range(4):
                p(f"ds_write_b128 v{56+a}, a[{acc+4*a}:{acc+4*a+3}] offset:{rt*8192 + dt*128}")
    p("s_waitcnt lgkmcnt(0)")
    p("s_barrier")
    for q in range(NQ):
        for w in range(NW):
            b = 64 + (q * NW + w) * 4
            p(f"ds_read_b128 v[{b}:{b+3}], v{60 if w < 4 else 61} offset:{(w%4)*16384 + q*1024}")
    for q in range(NQ):
        for w in range(NW):
            b = 64 + (q * NW + w) * 4
            for i in range(4):
                p(f"v_add_f32 v{32+4*q+i}, v{32+4*q+i}, v{b+i}")
        p(f"s_mov_b32 s54, {q*8192}")
        p(f"buffer_store_dwordx4 v[{32+4*q}:{35+4*q}], v10, s[44:47], s54 offen")
    if stamps:
        p("s_waitcnt vmcnt(0)")
        p("s_memtime s[68:69]")
        p("s_memrealtime s[70:71]")
        p("s_waitcnt lgkmcnt(0)")
        p("s_lshl_b32 s19, s2, 3")
        p("s_add_u32 s19, s19, s14")
        p("s_lshl_b32 s19, s19, 6")
        p("s_add_u32 s19, s19, 0x5000000")
        add64(p, 48, 49, 12, 13, "s19")
        srd(p, 72, 48, 49, 64)
        for i, r in enumerate([60, 64, 66, 68, 62, 70]):
            p(f"v_mov_b32 v{64+i}, s{r}")
        p("v_mov_b32 v70, 0")
        p("s_mov_b64 exec, 1")
        p("buffer_store_dwordx4 v[64:67], v70, s[72:75], 0 offen")
        p("buffer_store_dwordx2 v[68:69], v70, s[72:75], 0 offen offset:16")
    p.label(end)
    p("s_endpgm")
    nv = FB + DEPTH * 16
    accum = (max(nv, 128) + 3) // 4 * 4
    code = kernel_header(name) + finalize(p)
    desc = kernel_desc(name, accum + 64, 80, accum)
    return code, desc, NW * 16384
```

```python
import sys
sys.path.insert(0, "dev")
from asmlib import *
from gen_k2 import KA, srd, add64, kernel_header, kernel_desc
from gen import compose

def bench(name, xcdmap, order, parts=("x","b","w"), pf=False):
    p = Prog()
    p("s_cmp_ge_u32 s2, 256")
    p(f"s_cbranch_scc1 {name}_end")
    p("s_memtime s[80:81]")
    p(f"s_load_dwordx2 s[4:5], s[0:1], {KA['x']}")
    p(f"s_load_dwordx4 s[8:11], s[0:1], {KA['bre']}")
    p(f"s_load_dwordx4 s[16:19], s[0:1], {KA['w1']}")
    p(f"s_load_dwordx4 s[20:23], s[0:1], {KA['dbg']}")
    p("v_lshrrev_b32 v1, 6, v0")
    p("s_and_b32 s25, s2, 7")
    p("v_readfirstlane_b32 s24, v1")
    p("v_and_b32 v1, 63, v0")
    p("s_lshr_b32 s26, s2, 3")
    if xcdmap == 0:
        p("s_lshr_b32 s27, s26, 4"); p("s_lshl_b32 s25, s25, 1"); p("s_add_u32 s27, s27, s25"); p("s_and_b32 s28, s26, 15")
    else:
        p("s_lshr_b32 s27, s26, 3"); p("s_lshr_b32 s28, s25, 1"); p("s_lshl_b32 s28, s28, 2"); p("s_add_u32 s27, s27, s28")
        p("s_and_b32 s28, s26, 7"); p("s_and_b32 s53, s25, 1"); p("s_lshl_b32 s53, s53, 3"); p("s_add_u32 s28, s28, s53")
    p("s_lshr_b32 s29, s28, 2"); p("s_mul_i32 s29, s29, 7"); p("s_and_b32 s30, s28, 3"); p("s_lshl_b32 s31, s30, 1"); p("s_add_u32 s29, s29, s31")
    p("v_and_b32 v15, 7, v1"); p("v_lshlrev_b32 v15, 4, v15"); p("v_lshrrev_b32 v18, 3, v1")
    p("v_lshl_add_u32 v12, v18, 10, v15")
    p("s_movk_i32 s53, 3584"); p("v_mul_lo_u32 v14, v18, s53"); p("v_add_u32 v14, v14, v15")
    p("s_waitcnt lgkmcnt(0)")
    srd(p, 48, 4, 5, 2048*1024); srd(p, 52, 8, 9, 512*1024); srd(p, 56, 10, 11, 512*1024); srd(p, 44, 16, 17, 512*3584); srd(p, 32, 22, 23, 128 << 20)
    p("s_lshl_b32 s60, s27, 17"); p("s_lshl_b32 s61, s24, 14"); p("s_add_u32 s60, s60, s61")
    p("s_lshl_b32 s61, s28, 15"); p("s_and_b32 s62, s24, 3"); p("s_lshl_b32 s62, s62, 13"); p("s_add_u32 s61, s61, s62")
    p("s_cmp_ge_u32 s24, 4")
    p("s_cselect_b32 s52, s56, s52"); p("s_cselect_b32 s53, s57, s53")
    p(f"s_mul_i32 s57, s24, {8*3584}"); p("s_lshl_b32 s58, s29, 7"); p("s_add_u32 s57, s57, s58")
    p("s_lshl_b32 s56, s24, 10")
    if pf:
        p("v_lshlrev_b32 v20, 4, v1")
        p("s_lshl_b32 s64, s2, 3"); p("s_add_u32 s64, s64, s24"); p("s_lshl_b32 s65, s64, 10")
        p("buffer_load_dwordx4 v[24:27], v20, s[48:51], s65 offen")
        p("s_lshl_b32 s66, s2, 1"); p("s_and_b32 s67, s24, 1"); p("s_add_u32 s66, s66, s67"); p("s_lshl_b32 s66, s66, 10")
        p("s_and_b32 s67, s24, 2"); p("s_lshl_b32 s67, s67, 20"); p("s_add_u32 s66, s66, s67")
        p("buffer_load_dwordx4 v[28:31], v20, s[52:55], s66 offen")
        p("s_mul_i32 s66, s2, 7"); p("s_add_u32 s66, s66, s24"); p("s_lshl_b32 s66, s66, 10")
        p("s_cmp_eq_u32 s24, 7"); p("s_cselect_b32 s66, 0x7000000, s66")
        p("buffer_load_dwordx4 v[32:35], v20, s[44:47], s66 offen")
    seq = []
    def X(s):
        return [(48, 12, "s60", s*128 + i*8192) for i in range(2)] if "x" in parts else []
    def Bq(s):
        return [(52, 12, "s61", s*128)] if "b" in parts else []
    def W(un, i):
        return [(44, 14, "s57", i*64*3584 + un*128)] if "w" in parts else []
    if order == "seq":
        for s in range(8): seq += X(s) + Bq(s)
        for un in range(2):
            for i in range(8): seq += W(un, i)
    n = 0
    for (srdn, vo, sb, off) in seq:
        p(f"s_add_u32 m0, s56, {(n % 16) * 8192}")
        p(f"s_add_u32 s62, {sb}, {off}")
        p(f"buffer_load_dwordx4 v{vo}, s[{srdn}:{srdn+3}], s62 offen lds")
        n += 1
        if n == 3:
            p("s_memtime s[82:83]")
    p("s_memtime s[84:85]")
    p("s_waitcnt vmcnt(0)")
    p("s_memtime s[86:87]")
    p("s_waitcnt lgkmcnt(0)")
    p("s_lshl_b32 s47x, s2, 3".replace("s47x", "s63")); p("s_add_u32 s63, s63, s24"); p("s_lshl_b32 s63, s63, 4"); p("s_add_u32 s63, s63, 0x6000000")
    p("s_sub_u32 s82, s82, s80"); p("s_sub_u32 s84, s84, s80"); p("s_sub_u32 s86, s86, s80")
    p("v_mov_b32 v4, s82"); p("v_mov_b32 v5, s84"); p("v_mov_b32 v6, s86"); p("v_mov_b32 v7, 0"); p("v_mov_b32 v8, s63")
    p("s_mov_b64 exec, 1")
    p("buffer_store_dwordx4 v[4:7], v8, s[32:35], 0 offen")
    p.label(name + "_end")
    p("s_endpgm")
    return (name, 256, 512, kernel_header(name) + finalize(p), kernel_desc(name, 64, 96, 64), 163840), n

ks = []; order = []
for xm in (1,):
    for pf in (False, True):
        for parts in (("x","b","w"), ("x","b")):
            n = f"m_x{xm}_{''.join(parts)}_pf{int(pf)}_kernel"
            k, cnt = bench(n, xm, "seq", parts, pf)
            ks.append(k); order.append((n, cnt))
open(sys.argv[1], "w").write(compose(ks))
import json; json.dump(order, open(sys.argv[1]+".json","w"))
```

```python
from asmlib import *
from layout import *
from gen_k2 import KA, srd, add64, kernel_header, kernel_desc


def gen_k2(name="k2_kernel", DEPTH=8, NW=8, stamps=False, loop=False, xcdmap=1, force0=False):
    p = Prog()
    STEPS = NSTEP // NW
    RPW = 64 // NW
    NQ = RPW // 4
    end = name + "_end"
    p("s_cmp_ge_u32 s2, 256")
    p(f"s_cbranch_scc1 {end}")
    if stamps:
        p("s_memtime s[60:61]")
        p("s_memrealtime s[62:63]")
    p(f"s_load_dwordx2 s[12:13], s[0:1], {KA['ws']}")
    p(f"s_load_dwordx2 s[4:5], s[0:1], {KA['x']}")
    p(f"s_load_dwordx2 s[6:7], s[0:1], {KA['dsk']}")
    p(f"s_load_dwordx4 s[8:11], s[0:1], {KA['b2']}")
    p("v_lshrrev_b32 v1, 6, v0")
    p("v_and_b32 v2, 63, v0")
    p("v_readfirstlane_b32 s14, v1")
    p("s_and_b32 s15, s2, 7")
    p("s_lshr_b32 s16, s2, 3")
    if xcdmap == 0:
        p("s_lshr_b32 s17, s16, 3")
        p("s_lshl_b32 s15, s15, 2")
        p("s_add_u32 s17, s17, s15")
        p("s_and_b32 s18, s16, 7")
    else:
        p("s_lshr_b32 s17, s16, 2")
        p("s_lshr_b32 s18, s15, 1")
        p("s_lshl_b32 s18, s18, 3")
        p("s_add_u32 s17, s17, s18")
        p("s_and_b32 s18, s16, 3")
        p("s_and_b32 s15, s15, 1")
        p("s_lshl_b32 s15, s15, 2")
        p("s_add_u32 s18, s18, s15")
    if force0:
        p("s_mov_b32 s17, 0"); p("s_mov_b32 s18, 0")
    p("v_lshlrev_b32 v3, 4, v2")
    p(f"s_mul_i32 s53, s14, {STEPS*2048}")
    p(f"s_mul_i32 s19, s17, {NSTEP*2048}")
    p(f"s_add_u32 s19, s19, {WS_H}")
    p(f"s_mul_i32 s50, s18, {NSTEP*2048}")
    p(f"s_add_u32 s50, s50, {WS_WC}")
    p("s_waitcnt lgkmcnt(0)")
    add64(p, 48, 49, 12, 13, "s19")
    srd(p, 20, 48, 49, NSTEP * 2048)
    add64(p, 48, 49, 12, 13, "s50")
    srd(p, 24, 48, 49, NSTEP * 2048)
    FB = 64

    def slot(st, i):
        b = FB + (st % DEPTH) * 16 + i * 4
        return f"v[{b}:{b+3}]"

    def loads(st):
        off = (st & 1) * 2048
        p(f"buffer_load_dwordx4 {slot(st,0)}, v3, s[20:23], s53 offen offset:{off}")
        p(f"buffer_load_dwordx4 {slot(st,2)}, v3, s[24:27], s53 offen offset:{off}")
        p(f"buffer_load_dwordx4 {slot(st,1)}, v3, s[20:23], s53 offen offset:{off+1024}")
        p(f"buffer_load_dwordx4 {slot(st,3)}, v3, s[24:27], s53 offen offset:{off+1024}")
        if st & 1:
            p("s_add_u32 s53, s53, 4096")
    for st in range(min(DEPTH, STEPS)):
        loads(st)
    if stamps:
        p("s_memtime s[76:77]")
    p("s_lshl_b32 s19, s17, 16")
    p("s_lshl_b32 s50, s18, 7")
    p("s_add_u32 s19, s19, s50")
    add64(p, 48, 49, 4, 5, "s19")
    srd(p, 28, 48, 49, 65536)
    p("s_sub_u32 s30, 65536, s50")
    p("s_lshl_b32 s19, s17, 9")
    p(f"s_add_u32 s19, s19, {WS_STATS}")
    add64(p, 48, 49, 12, 13, "s19")
    srd(p, 32, 48, 49, 512)
    add64(p, 48, 49, 6, 7, "s50")
    srd(p, 36, 48, 49, 128)
    add64(p, 48, 49, 8, 9, "s50")
    srd(p, 40, 48, 49, 128)
    p("s_lshl_b32 s19, s17, 17")
    p("s_lshl_b32 s51, s18, 8")
    p("s_add_u32 s19, s19, s51")
    add64(p, 48, 49, 10, 11, "s19")
    srd(p, 44, 48, 49, 131072)
    p("s_sub_u32 s46, 131072, s51")
    p("v_lshrrev_b32 v4, 4, v2")
    p("v_and_b32 v5, 15, v2")
    p(f"s_mul_i32 s52, s14, {RPW}")
    p("v_add_u32 v6, s52, v4")
    p("v_lshlrev_b32 v7, 10, v6")
    p("v_lshl_add_u32 v7, v5, 3, v7")
    p("v_lshlrev_b32 v8, 3, v6")
    p("v_lshlrev_b32 v9, 3, v5")
    p("v_lshlrev_b32 v10, 11, v6")
    p("v_lshl_add_u32 v10, v5, 4, v10")
    for q in range(NQ):
        p(f"s_mov_b32 s54, {q*4096}")
        p(f"buffer_load_dwordx2 v[{12+2*q}:{13+2*q}], v7, s[28:31], s54 offen")
        p(f"buffer_load_dwordx2 v[{20+2*q}:{21+2*q}], v8, s[32:35], 0 offen offset:{q*32}")
    p("buffer_load_dwordx2 v[28:29], v9, s[36:39], 0 offen")
    p("buffer_load_dwordx2 v[30:31], v9, s[40:43], 0 offen")
    p("v_and_b32 v50, 31, v2")
    p("v_lshrrev_b32 v51, 5, v2")
    p("v_bfe_u32 v52, v50, 2, 1")
    p("v_lshlrev_b32 v53, 4, v52")
    p("v_lshrrev_b32 v54, 3, v50")
    p("v_lshl_add_u32 v53, v54, 2, v53")
    p("v_and_b32 v54, 3, v50")
    p("v_add_u32 v53, v53, v54")
    p("v_lshl_add_u32 v54, v52, 2, v54")
    p("s_lshl_b32 s55, s14, 14")
    p("v_lshlrev_b32 v53, 8, v53")
    p("v_add_u32 v53, s55, v53")
    for a in range(4):
        p(f"v_add_u32 v55, {2*a}, v51")
        p("v_xor_b32 v55, v55, v54")
        p(f"v_lshl_add_u32 v{56+a}, v55, 4, v53")
    if NW == 4:
        p("s_and_b32 s56, s14, 1")
    else:
        p("s_bfe_u32 s56, s14, 0x10001")
    p("s_lshl_b32 s56, s56, 2")
    p("v_or_b32 v55, s56, v4")
    p("v_xor_b32 v55, v55, v5")
    p("v_lshlrev_b32 v60, 8, v6")
    p("v_lshl_add_u32 v60, v55, 4, v60")
    p("v_add_u32 v61, 0x10000, v60")

    def base_calc():
        DK = [48, 49, 50, 51]
        B2 = [52, 53, 54, 55]
        p("v_lshlrev_b32 v48, 16, v28")
        p("v_and_b32 v49, 0xffff0000, v28")
        p("v_lshlrev_b32 v50, 16, v29")
        p("v_and_b32 v51, 0xffff0000, v29")
        p("v_lshlrev_b32 v52, 16, v30")
        p("v_and_b32 v53, 0xffff0000, v30")
        p("v_lshlrev_b32 v54, 16, v31")
        p("v_and_b32 v55, 0xffff0000, v31")
        for q in range(NQ):
            xr = [32 + 4 * q + i for i in range(4)]
            m_, rs = 20 + 2 * q, 21 + 2 * q
            t = [28, 29, 30, 31]
            p(f"v_lshlrev_b32 v{xr[0]}, 16, v{12+2*q}")
            p(f"v_and_b32 v{xr[1]}, 0xffff0000, v{12+2*q}")
            p(f"v_lshlrev_b32 v{xr[2]}, 16, v{13+2*q}")
            p(f"v_and_b32 v{xr[3]}, 0xffff0000, v{13+2*q}")
            for i in range(4):
                p(f"v_sub_f32 v{t[i]}, v{xr[i]}, v{m_}")

            def rnd():
                p(f"v_cvt_pk_bf16_f32 v62, v{t[0]}, v{t[1]}")
                p(f"v_cvt_pk_bf16_f32 v63, v{t[2]}, v{t[3]}")
                p(f"v_lshlrev_b32 v{t[0]}, 16, v62")
                p(f"v_and_b32 v{t[1]}, 0xffff0000, v62")
                p(f"v_lshlrev_b32 v{t[2]}, 16, v63")
                p(f"v_and_b32 v{t[3]}, 0xffff0000, v63")
            rnd()
            for i in range(4):
                p(f"v_mul_f32 v{t[i]}, v{t[i]}, v{rs}")
            rnd()
            for i in range(4):
                p(f"v_mul_f32 v{t[i]}, v{t[i]}, v{DK[i]}")
            rnd()
            for i in range(4):
                p(f"v_add_f32 v{xr[i]}, v{xr[i]}, v{t[i]}")
                p(f"v_add_f32 v{xr[i]}, v{xr[i]}, v{B2[i]}")
    if loop:
        assert STEPS % DEPTH == 0 and DEPTH % 2 == 0
        base_calc()
        for i in range(64):
            p(f"v_accvgpr_write_b32 a{i}, 0")
        if stamps:
            p("s_memtime s[64:65]")
        p(f"s_mov_b32 s57, {STEPS // DEPTH}")
        p("s_waitcnt lgkmcnt(0)")
        p(";@carry")
        p.label(name + "_loop")
        for st in range(DEPTH):
            p.raw(f"s_waitcnt vmcnt({4*(DEPTH-1)})")
            for dt in range(2):
                for rt in range(2):
                    acc = (dt * 2 + rt) * 16
                    p.raw(f"v_mfma_f32_32x32x16_bf16 a[{acc}:{acc+15}], {slot(st,2+dt)}, {slot(st,rt)}, a[{acc}:{acc+15}]")
            off = (st & 1) * 2048
            p.raw(f"buffer_load_dwordx4 {slot(st,0)}, v3, s[20:23], s53 offen offset:{off}")
            p.raw(f"buffer_load_dwordx4 {slot(st,2)}, v3, s[24:27], s53 offen offset:{off}")
            p.raw(f"buffer_load_dwordx4 {slot(st,1)}, v3, s[20:23], s53 offen offset:{off+1024}")
            p.raw(f"buffer_load_dwordx4 {slot(st,3)}, v3, s[24:27], s53 offen offset:{off+1024}")
            if st & 1:
                p.raw("s_add_u32 s53, s53, 4096")
        p.raw("s_sub_u32 s57, s57, 1")
        p.raw("s_cmp_lg_u32 s57, 0")
        p.raw(f"s_cbranch_scc1 {name}_loop")
        p.raw("s_nop 15")
        p.raw("s_waitcnt vmcnt(0)")
    else:
      for st in range(STEPS):
        for dt in range(2):
            for rt in range(2):
                acc = (dt * 2 + rt) * 16
                c = "0" if st == 0 else f"a[{acc}:{acc+15}]"
                p(f"v_mfma_f32_32x32x16_bf16 a[{acc}:{acc+15}], {slot(st,2+dt)}, {slot(st,rt)}, {c}")
        if stamps and st == 0:
            p("s_memtime s[64:65]")
        if st + DEPTH < STEPS:
            loads(st + DEPTH)
        if st == STEPS - DEPTH:
            base_calc()
    if stamps:
        p("s_memtime s[66:67]")
    for dt in range(2):
        for rt in range(2):
            acc = (dt * 2 + rt) * 16
            for a in range(4):
                p(f"ds_write_b128 v{56+a}, a[{acc+4*a}:{acc+4*a+3}] offset:{rt*8192 + dt*128}")
    p("s_waitcnt lgkmcnt(0)")
    p("s_barrier")
    for q in range(NQ):
        for w in range(NW):
            b = 64 + (q * NW + w) * 4
            p(f"ds_read_b128 v[{b}:{b+3}], v{60 if w < 4 else 61} offset:{(w%4)*16384 + q*1024}")
    for q in range(NQ):
        for w in range(NW):
            b = 64 + (q * NW + w) * 4
            for i in range(4):
                p(f"v_add_f32 v{32+4*q+i}, v{32+4*q+i}, v{b+i}")
        p(f"s_mov_b32 s54, {q*8192}")
        p(f"buffer_store_dwordx4 v[{32+4*q}:{35+4*q}], v10, s[44:47], s54 offen")
    if stamps:
        p("s_waitcnt vmcnt(0)")
        p("s_memtime s[68:69]")
        p("s_memrealtime s[70:71]")
        p("s_waitcnt lgkmcnt(0)")
        p("s_lshl_b32 s19, s2, 3")
        p("s_add_u32 s19, s19, s14")
        p("s_lshl_b32 s19, s19, 6")
        p("s_add_u32 s19, s19, 0x5000000")
        add64(p, 48, 49, 12, 13, "s19")
        srd(p, 72, 48, 49, 64)
        for i, r in enumerate([60, 64, 66, 68, 62, 70, 76]):
            p(f"v_mov_b32 v{64+i}, s{r}")
        p("v_mov_b32 v72, 0")
        p("s_mov_b64 exec, 1")
        p("buffer_store_dwordx4 v[64:67], v72, s[72:75], 0 offen")
        p("buffer_store_dwordx4 v[68:71], v72, s[72:75], 0 offen offset:16")
    p.label(end)
    p("s_endpgm")
    nv = FB + DEPTH * 16
    accum = (max(nv, 128) + 3) // 4 * 4
    code = kernel_header(name) + finalize(p)
    desc = kernel_desc(name, accum + 64, 80, accum)
    return code, desc, NW * 16384
```

```python
from asmlib import *
from layout import *
from gen_k2 import KA, srd, add64, kernel_header, kernel_desc


def gen_k2(name="k2_kernel", NLPG=2, stamps=False, xcdmap=0):
    p = Prog()
    STEPS = 44
    CH = 2
    NCH = STEPS // CH
    RING = 5
    GB = RING * CH * 4096
    NW = 4 + 4 * NLPG
    end = name + "_end"
    p("s_cmp_ge_u32 s2, 256")
    p(f"s_cbranch_scc1 {end}")
    if stamps:
        p("s_memtime s[60:61]")
        p("s_memrealtime s[62:63]")
    p(f"s_load_dwordx2 s[12:13], s[0:1], {KA['ws']}")
    p(f"s_load_dwordx2 s[4:5], s[0:1], {KA['x']}")
    p(f"s_load_dwordx2 s[6:7], s[0:1], {KA['dsk']}")
    p(f"s_load_dwordx4 s[8:11], s[0:1], {KA['b2']}")
    p("v_lshrrev_b32 v1, 6, v0")
    p("v_and_b32 v2, 63, v0")
    p("v_readfirstlane_b32 s14, v1")
    p("s_and_b32 s15, s2, 7")
    p("s_lshr_b32 s16, s2, 3")
    if xcdmap == 0:
        p("s_lshr_b32 s17, s16, 3")
        p("s_lshl_b32 s15, s15, 2")
        p("s_add_u32 s17, s17, s15")
        p("s_and_b32 s18, s16, 7")
    else:
        p("s_lshr_b32 s17, s16, 2")
        p("s_lshr_b32 s18, s15, 1")
        p("s_lshl_b32 s18, s18, 3")
        p("s_add_u32 s17, s17, s18")
        p("s_and_b32 s18, s16, 3")
        p("s_and_b32 s15, s15, 1")
        p("s_lshl_b32 s15, s15, 2")
        p("s_add_u32 s18, s18, s15")
    p("v_lshlrev_b32 v3, 4, v2")
    p("s_cmp_lt_u32 s14, 4")
    p(";@carry")
    p(f"s_cbranch_scc1 {name}_C")
    p("s_sub_u32 s19, s14, 4")
    p("s_and_b32 s20, s19, 3")
    p("s_lshr_b32 s21, s19, 2")
    assert NLPG == 2
    p(f"s_mul_i32 s22, s17, {NSTEP*2048}")
    p(f"s_add_u32 s22, s22, {WS_H}")
    p(f"s_mul_i32 s23, s18, {NSTEP*2048}")
    p(f"s_add_u32 s23, s23, {WS_WC}")
    p("s_cmp_eq_u32 s21, 0")
    p("s_cselect_b32 s22, s22, s23")
    p(f"s_mul_i32 s53, s20, {STEPS*2048}")
    p(f"s_mul_i32 s54, s20, {GB}")
    p("s_lshl_b32 s55, s21, 11")
    p("s_add_u32 s54, s54, s55")
    p("s_waitcnt lgkmcnt(0)")
    add64(p, 48, 49, 12, 13, "s22")
    srd(p, 24, 48, 49, NSTEP * 2048)

    def dmas(c):
        for st in range(CH):
            for i in range(2):
                slot = (c % RING) * CH * 4096 + st * 4096 + i * 1024
                p(f"s_add_u32 m0, s54, {slot}")
                p(f"s_add_u32 s56, s53, {(c*CH+st)*2048 + i*1024}")
                p("buffer_load_dwordx4 v3, s[24:27], s56 offen lds")
        p.mark(f"c{c}")
    for c in range(RING - 1):
        dmas(c)
    for c in range(NCH):
        p.waitvm(f"c{c}", lgkm=False)
        p("s_barrier")
        if c + RING - 1 < NCH:
            dmas(c + RING - 1)
    p("s_barrier")
    p("s_endpgm")
    p(";@carry")
    p.label(name + "_C")
    RPW = 16
    p(f"s_mul_i32 s54, s14, {GB}")
    p("v_add_u32 v4, s54, v3")
    p("s_waitcnt lgkmcnt(0)")
    p("s_lshl_b32 s19, s17, 16")
    p("s_lshl_b32 s50, s18, 7")
    p("s_add_u32 s19, s19, s50")
    add64(p, 48, 49, 4, 5, "s19")
    srd(p, 28, 48, 49, 65536)
    p("s_sub_u32 s30, 65536, s50")
    p("s_lshl_b32 s19, s17, 9")
    p(f"s_add_u32 s19, s19, {WS_STATS}")
    add64(p, 48, 49, 12, 13, "s19")
    srd(p, 32, 48, 49, 512)
    add64(p, 48, 49, 6, 7, "s50")
    srd(p, 36, 48, 49, 128)
    add64(p, 48, 49, 8, 9, "s50")
    srd(p, 40, 48, 49, 128)
    p("s_lshl_b32 s19, s17, 17")
    p("s_lshl_b32 s51, s18, 8")
    p("s_add_u32 s19, s19, s51")
    add64(p, 48, 49, 10, 11, "s19")
    srd(p, 44, 48, 49, 131072)
    p("s_sub_u32 s46, 131072, s51")
    p("v_lshrrev_b32 v5, 4, v2")
    p("v_and_b32 v6, 15, v2")
    p("s_lshl_b32 s52, s14, 4")
    p("v_add_u32 v7, s52, v5")
    p("v_lshlrev_b32 v8, 10, v7")
    p("v_lshl_add_u32 v8, v6, 3, v8")
    p("v_lshlrev_b32 v9, 3, v7")
    p("v_lshlrev_b32 v10, 3, v6")
    p("v_lshlrev_b32 v11, 11, v7")
    p("v_lshl_add_u32 v11, v6, 4, v11")
    for q in range(4):
        p(f"s_mov_b32 s54, {q*4096}")
        p(f"buffer_load_dwordx2 v[{40+2*q}:{41+2*q}], v8, s[28:31], s54 offen")
        p(f"buffer_load_dwordx2 v[{48+2*q}:{49+2*q}], v9, s[32:35], 0 offen offset:{q*32}")
    p("buffer_load_dwordx2 v[56:57], v10, s[36:39], 0 offen")
    p("buffer_load_dwordx2 v[58:59], v10, s[40:43], 0 offen")
    p("v_and_b32 v74, 31, v2")
    p("v_lshrrev_b32 v75, 5, v2")
    p("v_bfe_u32 v76, v74, 2, 1")
    p("v_lshlrev_b32 v77, 4, v76")
    p("v_lshrrev_b32 v78, 3, v74")
    p("v_lshl_add_u32 v77, v78, 2, v77")
    p("v_and_b32 v78, 3, v74")
    p("v_add_u32 v77, v77, v78")
    p("v_lshl_add_u32 v78, v76, 2, v78")
    p(f"s_mul_i32 s55, s14, {GB}")
    p("v_lshlrev_b32 v77, 8, v77")
    p("v_add_u32 v77, s55, v77")
    for a in range(4):
        p(f"v_add_u32 v79, {2*a}, v75")
        p("v_xor_b32 v79, v79, v78")
        p(f"v_lshl_add_u32 v{28+a}, v79, 4, v77")
    p("s_and_b32 s56, s14, 1")
    p("s_lshl_b32 s56, s56, 2")
    p("v_or_b32 v79, s56, v5")
    p("v_xor_b32 v79, v79, v6")
    p("v_lshlrev_b32 v32, 8, v7")
    p("v_lshl_add_u32 v32, v79, 4, v32")
    p(f"v_add_u32 v33, {2*GB}, v32")
    DK = [60, 61, 62, 63]
    B2 = [64, 65, 66, 67]
    for t_ in ["v_lshlrev_b32 v60, 16, v56", "v_and_b32 v61, 0xffff0000, v56", "v_lshlrev_b32 v62, 16, v57", "v_and_b32 v63, 0xffff0000, v57",
               "v_lshlrev_b32 v64, 16, v58", "v_and_b32 v65, 0xffff0000, v58", "v_lshlrev_b32 v66, 16, v59", "v_and_b32 v67, 0xffff0000, v59"]:
        p(t_)
    for q in range(4):
        xr = [12 + 4 * q + i for i in range(4)]
        m_, rs = 48 + 2 * q, 49 + 2 * q
        t = [68, 69, 70, 71]
        for t_ in [f"v_lshlrev_b32 v{xr[0]}, 16, v{40+2*q}", f"v_and_b32 v{xr[1]}, 0xffff0000, v{40+2*q}",
                   f"v_lshlrev_b32 v{xr[2]}, 16, v{41+2*q}", f"v_and_b32 v{xr[3]}, 0xffff0000, v{41+2*q}"]:
            p(t_)
        for i in range(4): p(f"v_sub_f32 v{t[i]}, v{xr[i]}, v{m_}")
        rnd = [f"v_cvt_pk_bf16_f32 v72, v{t[0]}, v{t[1]}", f"v_cvt_pk_bf16_f32 v73, v{t[2]}, v{t[3]}",
               f"v_lshlrev_b32 v{t[0]}, 16, v72", f"v_and_b32 v{t[1]}, 0xffff0000, v72",
               f"v_lshlrev_b32 v{t[2]}, 16, v73", f"v_and_b32 v{t[3]}, 0xffff0000, v73"]
        for t_ in rnd: p(t_)
        for i in range(4): p(f"v_mul_f32 v{t[i]}, v{t[i]}, v{rs}")
        for t_ in rnd: p(t_)
        for i in range(4): p(f"v_mul_f32 v{t[i]}, v{t[i]}, v{DK[i]}")
        for t_ in rnd: p(t_)
        for i in range(4):
            p(f"v_add_f32 v{xr[i]}, v{xr[i]}, v{t[i]}")
            p(f"v_add_f32 v{xr[i]}, v{xr[i]}, v{B2[i]}")
    bc = []
    FB = 40

    def reads(c):
        o = []
        for st in range(CH):
            b = FB + ((c & 1) * CH + st) * 16
            off = (c % RING) * CH * 4096 + st * 4096
            for i in range(4):
                o.append(f"ds_read_b128 v[{b+4*i}:{b+4*i+3}], v4 offset:{off + i*1024}")
        return o

    def mfmas(c):
        o = []
        for st in range(CH):
            b = FB + ((c & 1) * CH + st) * 16
            for dt in range(2):
                for rt in range(2):
                    acc = (dt * 2 + rt) * 16
                    cc = "0" if (c == 0 and st == 0) else f"a[{acc}:{acc+15}]"
                    o.append(f"v_mfma_f32_32x32x16_bf16 a[{acc}:{acc+15}], v[{b+8+4*dt}:{b+8+4*dt+3}], v[{b+4*rt}:{b+4*rt+3}], {cc}")
        return o
    for c in range(NCH):
        p("s_barrier")
        if stamps and c == 0:
            p("s_memtime s[64:65]")
        rd = reads(c)
        mf = mfmas(c - 1) if c >= 1 else []
        seq = []
        for i in range(8):
            if i < len(mf): seq.append(mf[i])
            seq.append(rd[i])
            if c >= 6 and bc:
                for _ in range(3):
                    if bc: seq.append(bc.pop(0))
        for t in seq: p(t)
        p("s_waitcnt lgkmcnt(0)")
    for t in mfmas(NCH - 1): p(t)
    for t in bc: p(t)
    if stamps:
        p("s_memtime s[66:67]")
    for dt in range(2):
        for rt in range(2):
            acc = (dt * 2 + rt) * 16
            for a in range(4):
                p(f"ds_write_b128 v{28+a}, a[{acc+4*a}:{acc+4*a+3}] offset:{rt*8192 + dt*128}")
    p("s_waitcnt lgkmcnt(0)")
    p("s_barrier")
    for q in range(4):
        for w in range(4):
            b = 40 + (q * 4 + w) * 4
            p(f"ds_read_b128 v[{b}:{b+3}], v{32 if w < 2 else 33} offset:{(w%2)*GB + q*1024}")
    for q in range(4):
        for w in range(4):
            b = 40 + (q * 4 + w) * 4
            for i in range(4):
                p(f"v_add_f32 v{12+4*q+i}, v{12+4*q+i}, v{b+i}")
        p(f"s_mov_b32 s54, {q*8192}")
        p(f"buffer_store_dwordx4 v[{12+4*q}:{15+4*q}], v11, s[44:47], s54 offen")
    if stamps:
        p("s_waitcnt vmcnt(0)")
        p("s_memtime s[68:69]")
        p("s_memrealtime s[70:71]")
        p("s_waitcnt lgkmcnt(0)")
        p("s_lshl_b32 s19, s2, 3")
        p("s_add_u32 s19, s19, s14")
        p("s_lshl_b32 s19, s19, 6")
        p("s_add_u32 s19, s19, 0x5000000")
        add64(p, 48, 49, 12, 13, "s19")
        srd(p, 72, 48, 49, 64)
        for i, r in enumerate([60, 64, 66, 68, 62, 70, 64]):
            p(f"v_mov_b32 v{64+i}, s{r}")
        p("v_mov_b32 v72, 0")
        p("s_mov_b64 exec, 1")
        p("buffer_store_dwordx4 v[64:67], v72, s[72:75], 0 offen")
        p("buffer_store_dwordx4 v[68:71], v72, s[72:75], 0 offen offset:16")
    p.label(end)
    p("s_endpgm")
    code = kernel_header(name) + finalize(p)
    desc = kernel_desc(name, 168, 80, 104)
    return code, desc, 4 * GB, NW
```

```python
from asmlib import *
from layout import *
from gen_k2 import KA, srd, add64, kernel_header, kernel_desc
def gen_pf(name="pf_kernel"):
    p = Prog()
    p("s_cmp_ge_u32 s2, 256"); p(f"s_cbranch_scc1 {name}_end")
    p(f"s_load_dwordx2 s[12:13], s[0:1], {KA['ws']}")
    p("v_lshlrev_b32 v3, 4, v0")
    p("s_lshr_b32 s16, s2, 3")
    p(f"s_mul_i32 s17, s16, {WS_WC_BYTES//32}")
    p(f"s_add_u32 s17, s17, {WS_WC}")
    p("s_waitcnt lgkmcnt(0)")
    srd(p, 20, 12, 13, WS_END)
    for i in range(WS_WC_BYTES // 32 // 4096):
        p(f"buffer_load_dwordx4 v[{8+4*(i%8)}:{11+4*(i%8)}], v3, s[20:23], s17 offen")
        p("s_add_u32 s17, s17, 4096")
    p("s_waitcnt vmcnt(0)")
    p.label(name + "_end")
    p("s_endpgm")
    return kernel_header(name) + finalize(p), kernel_desc(name, 64, 64, 64), 0
```

```python
import sys
sys.path.insert(0, "dev")
from asmlib import *
from layout import *

def compose(kernels, header_comment=""):
    s = "; parallel_sum(ssm_conv_s5, dense_gelu) -- generated by own python generator\n"
    for (name, grid, block, code, desc, lds) in kernels:
        s += f"; @launch kernel={name} grid=({grid},1,1) block=({block},1,1) lds={lds}\n"
    s += '.amdgcn_target "amdgcn-amd-amdhsa--gfx950"\n.text\n'
    done = set()
    for (name, grid, block, code, desc, lds) in kernels:
        if name in done: continue
        done.add(name)
        s += code + "\n"
    s += '.section .rodata,"a"\n.p2align 6\n'
    done = set()
    for (name, grid, block, code, desc, lds) in kernels:
        if name in done: continue
        done.add(name)
        s += ".p2align 6\n" + desc
    return s

if __name__ == "__main__":
    which = sys.argv[1]
    outp = sys.argv[2]
    if which == "k2":
        from gen_k2 import gen_k2
        depth = int(sys.argv[3]) if len(sys.argv) > 3 else 8
        opts = sys.argv[4:]
        code, desc, lds = gen_k2(DEPTH=depth, force_rg0=("rg0" in opts), force_cg0=("cg0" in opts), stamps=("stamps" in opts), nomfma=("nomfma" in opts))
        open(outp, "w").write(compose([("k2_kernel", 256, 256, code, desc, lds)]))

    if which == "k0":
        from gen_k0 import gen_k0
        code, desc, lds = gen_k0()
        open(outp, "w").write(compose([("k0_kernel", 256, 256, code, desc, lds)]))
    if which == "all":
        from gen_k0 import gen_k0
        from gen_k1 import gen_k1
        from gen_k2 import gen_k2
        opts = sys.argv[3:]
        ks = []
        code, desc, lds = gen_k0(); ks.append(("k0_kernel", 256, 256, code, desc, lds))
        code, desc, lds = gen_k1(stamps=("stamps" in opts)); ks.append(("k1_kernel", 256, 512, code, desc, lds))
        code, desc, lds = gen_k2(); ks.append(("k2_kernel", 256, 256, code, desc, lds))
        open(outp, "w").write(compose(ks))

    if which == "v2":
        from gen_k1b import gen_k1
        from gen_k2 import gen_k2
        opts = sys.argv[3:]
        ks = []
        code, desc, lds = gen_k1(stamps=("stamps" in opts)); ks.append(("k1_kernel", 256, 512, code, desc, lds))
        code, desc, lds = gen_k2(); ks.append(("k2_kernel", 256, 256, code, desc, lds))
        open(outp, "w").write(compose(ks))

    if which == "v3":
        from gen_k1c import gen_k1
        from gen_k2 import gen_k2
        opts = sys.argv[3:]
        ks = []
        kw = {}
        for o in opts:
            if o.startswith("xcd="): kw["xcdmap"] = int(o[4:])
            if o.startswith("at="): kw["a_tiles"] = tuple(int(c) for c in o[3:])
            if o.startswith("bt="): kw["b_tiles"] = tuple(int(c) for c in o[3:])
            if o == "nopf": kw["prefetch"] = False
            if o == "norot": kw["rot"] = False
        code, desc, lds = gen_k1(stamps=("stamps" in opts), **kw); ks.append(("k1_kernel", 256, 512, code, desc, lds))
        code, desc, lds = gen_k2(); ks.append(("k2_kernel", 256, 256, code, desc, lds))
        open(outp, "w").write(compose(ks))

    if which == "v4":
        from gen_k1c import gen_k1
        from gen_k2b import gen_k2
        opts = sys.argv[3:]
        ks = []
        kw = {}; kw2 = {}
        for o in opts:
            if o.startswith("xcd="): kw["xcdmap"] = int(o[4:])
            if o.startswith("at="): kw["a_tiles"] = tuple(int(c) for c in o[3:])
            if o.startswith("bt="): kw["b_tiles"] = tuple(int(c) for c in o[3:])
            if o.startswith("nw="): kw2["NW"] = int(o[3:])
            if o.startswith("depth="): kw2["DEPTH"] = int(o[6:])
        nw = kw2.get("NW", 8)
        code, desc, lds = gen_k1(stamps=("stamps" in opts), **kw); ks.append(("k1_kernel", 256, 512, code, desc, lds))
        code, desc, lds = gen_k2(stamps=("stamps" in opts), **kw2); ks.append(("k2_kernel", 256, 64*nw, code, desc, lds))
        open(outp, "w").write(compose(ks))

    if which == "k2b":
        from gen_k2b import gen_k2
        opts = sys.argv[3:]
        kw2 = {}
        for o in opts:
            if o.startswith("nw="): kw2["NW"] = int(o[3:])
            if o.startswith("depth="): kw2["DEPTH"] = int(o[6:])
            if o == "loop": kw2["loop"] = True
            if o == "f0": kw2["force0"] = True
            if o.startswith("xcd="): kw2["xcdmap"] = int(o[4:])
        nw = kw2.get("NW", 8)
        code, desc, lds = gen_k2(stamps=True, **kw2)
        open(outp, "w").write(compose([("k2_kernel", 256, 64*nw, code, desc, lds)]))

    if which == "v5":
        from gen_k1d import gen_k1
        from gen_k2b import gen_k2
        opts = sys.argv[3:]
        ks = []
        kw = {}; kw2 = {}
        st = 0
        for o in opts:
            if o.startswith("nw="): kw2["NW"] = int(o[3:])
            if o.startswith("depth="): kw2["DEPTH"] = int(o[6:])
            if o.startswith("stamps"): st = int(o[6:] or 1)
            if o.startswith("xcd="): kw["xcdmap"] = int(o[4:]); kw2["xcdmap"] = int(o[4:])
            if o == "nopf": kw["prefetch"] = False
        nw = kw2.get("NW", 8)
        code, desc, lds = gen_k1(stamps=st, **kw); ks.append(("k1_kernel", 256, 512, code, desc, lds))
        code, desc, lds = gen_k2(stamps=(st > 0), **kw2); ks.append(("k2_kernel", 256, 64*nw, code, desc, lds))
        open(outp, "w").write(compose(ks))

    if which == "v5pf":
        from gen_k1d import gen_k1
        from gen_k2b import gen_k2
        from gen_pf import gen_pf
        ks = []
        code, desc, lds = gen_k1(stamps=1, prefetch=False); ks.append(("k1_kernel", 256, 512, code, desc, lds))
        if "nopf" not in sys.argv:
            code, desc, lds = gen_pf(); ks.append(("pf_kernel", 256, 256, code, desc, lds))
        code, desc, lds = gen_k2(stamps=True, xcdmap=0); ks.append(("k2_kernel", 256, 512, code, desc, lds))
        open(outp, "w").write(compose(ks))

    if which == "k2h":
        from gen_k2h import gen_k2
        kw = {}
        for o in sys.argv[3:]:
            if o.startswith("xcd="): kw["xcdmap"] = int(o[4:])
        code, desc, lds, nw = gen_k2(stamps=True, **kw)
        open(outp, "w").write(compose([("k2_kernel", 256, 64*nw, code, desc, lds)]))
    if which == "v6":
        import importlib
        opts = sys.argv[3:]
        k1mod = "gen_k1d"
        kw = {}; kw2 = {}
        st = 0
        for o in opts:
            if o.startswith("stamps"): st = int(o[6:] or 1)
            if o.startswith("xcd1="): kw["xcdmap"] = int(o[5:])
            if o.startswith("xcd2="): kw2["xcdmap"] = int(o[5:])
            if o == "pf": kw["prefetch"] = True
            if o.startswith("k1="): k1mod = o[3:]
            if o == "wt": kw["stflag"] = "sc0 sc1"
            if o == "wt1": kw["stflag"] = "sc1"
        kw.setdefault("prefetch", False)
        gen_k1 = importlib.import_module(k1mod).gen_k1
        from gen_k2h import gen_k2
        ks = []
        code, desc, lds = gen_k1(stamps=st, **kw); ks.append(("k1_kernel", 256, 512, code, desc, lds))
        code, desc, lds, nw = gen_k2(stamps=(st > 0), **kw2); ks.append(("k2_kernel", 256, 64*nw, code, desc, lds))
        open(outp, "w").write(compose(ks))
```

```python
from asmlib import *
from layout import *
from gen_k2 import KA, srd, add64, kernel_header, kernel_desc

SLOT = 24576
NSLOT = 6
U0 = 49152
U1A = 114688
M_STM = 16384
M_STR = 17408
M_CSB = 17920
M_E = 18432
M_CST = 20480
M_FLG = 21504
M_EJ = 24576
M_TB = 28672
LOG2E = 1.4426950408889634
WS_CSP = WS_END
WS_CSP_BYTES = 16 * 16 * 128 * 8
WS_E2 = WS_CSP + WS_CSP_BYTES
WS_E2_BYTES = 16 * 16 * 512
WS_T = WS_E2 + WS_E2_BYTES
WS_END2 = WS_T + 256
NONCE = 93
M_ZERO = 21760
CFR = 100
CSW0 = 96
STV = 126
WS, DBG, B1, W1, XB = 32, 36, 40, 44, 48


def f32(x):
    import struct
    return "0x%08x" % struct.unpack("<I", struct.pack("<f", x))[0]


def weave(slots, fill, per):
    out = []
    j = 0

    def add(items):
        for it in items:
            if isinstance(it, (list, tuple)):
                out.extend(it)
            else:
                out.append(it)
    for i, s in enumerate(slots):
        out += s
        k = per[i] if isinstance(per, (list, tuple)) else per
        add(fill[j:j + k])
        j += k
    add(fill[j:])
    return out


def gen_k1(name="k1_kernel", stamps=0, xcdmap=1, prefetch=True, stflag=""):
    p = Prog()
    end = name + "_end"
    stn = {"i": 1}

    def emit(lst):
        for t in lst:
            if t.startswith(";@"):
                p.raw(t)
            else:
                p(t)

    def stamp(level=1):
        if stamps >= level:
            p("s_memtime s[94:95]")
            p("s_waitcnt lgkmcnt(0)")
            p(f"v_writelane_b32 v{STV}, s94, {stn['i']}")
            stn["i"] += 1

    def bar(level=2):
        p("s_barrier")
        stamp(level)

    p("s_cmp_ge_u32 s2, 256")
    p(f"s_cbranch_scc1 {end}")
    if stamps:
        p("s_memtime s[80:81]")
        p("s_memrealtime s[90:91]")
    p(f"s_load_dwordx2 s[4:5], s[0:1], {KA['x']}")
    p(f"s_load_dwordx4 s[8:11], s[0:1], {KA['bre']}")
    p(f"s_load_dwordx4 s[16:19], s[0:1], {KA['w1']}")
    p(f"s_load_dwordx4 s[20:23], s[0:1], {KA['dbg']}")
    p(f"s_load_dwordx4 s[12:15], s[0:1], {KA['lre']}")
    p(f"s_load_dwordx2 s[6:7], s[0:1], {KA['ldt']}")
    p("v_lshrrev_b32 v1, 6, v0")
    p("s_and_b32 s25, s2, 7")
    p("v_readfirstlane_b32 s24, v1")
    p("v_and_b32 v1, 63, v0")
    p("s_lshr_b32 s26, s2, 3")
    if xcdmap == 0:
        p("s_lshr_b32 s27, s26, 4")
        p("s_lshl_b32 s25, s25, 1")
        p("s_add_u32 s27, s27, s25")
        p("s_and_b32 s28, s26, 15")
    else:
        p("s_lshr_b32 s27, s26, 3")
        p("s_lshr_b32 s28, s25, 1")
        p("s_lshl_b32 s28, s28, 2")
        p("s_add_u32 s27, s27, s28")
        p("s_and_b32 s28, s26, 7")
        p("s_and_b32 s53, s25, 1")
        p("s_lshl_b32 s53, s53, 3")
        p("s_add_u32 s28, s28, s53")
    p("s_lshr_b32 s29, s28, 2")
    p("s_mul_i32 s29, s29, 7")
    p("s_and_b32 s30, s28, 3")
    p("s_lshl_b32 s31, s30, 1")
    p("s_add_u32 s29, s29, s31")
    if stamps:
        p(f"v_mov_b32 v{STV}, 0")
        p("s_mov_b32 s92, s24")
    p("v_and_b32 v2, 31, v1")
    p("v_lshrrev_b32 v3, 5, v1")
    p("s_and_b32 s31, s24, 3")
    p("s_lshl_b32 s52, s31, 12")
    p("v_and_b32 v15, 7, v1")
    p("v_lshrrev_b32 v18, 4, v1")
    p("v_xor_b32 v15, v15, v18")
    p("v_lshlrev_b32 v15, 4, v15")
    p("v_lshlrev_b32 v19, 4, v3")
    p("v_bfe_u32 v20, v1, 3, 2")
    p("v_add_u32 v19, v19, v20")
    p("v_lshl_add_u32 v12, v19, 10, v15")
    p("v_xor_b32 v13, 64, v12")
    p("v_lshrrev_b32 v18, 3, v1")
    p("v_lshl_add_u32 v127, v18, 10, v15")
    p("s_and_b32 s53, s24, 1")
    p("s_lshl_b32 s53, s53, 6")
    p("v_xor_b32 v127, s53, v127")
    p("s_lshl_b32 s54, s27, 17")
    p("s_lshr_b32 s53, s24, 1")
    p("s_lshl_b32 s53, s53, 15")
    p("s_add_u32 s54, s54, s53")
    p("s_and_b32 s53, s24, 1")
    p("s_lshl_b32 s53, s53, 13")
    p("s_add_u32 s54, s54, s53")
    p("s_lshl_b32 s55, s28, 15")
    p("s_and_b32 s53, s24, 3")
    p("s_lshl_b32 s53, s53, 13")
    p("s_add_u32 s55, s55, s53")
    p("s_lshl_b32 s58, s24, 11")
    p("s_lshl_b32 s56, s24, 10")
    p(f"s_mul_i32 s57, s24, {8*3584}")
    p("s_lshl_b32 s53, s29, 7")
    p("s_add_u32 s57, s57, s53")
    p("s_mov_b32 s25, s24")
    p("s_cmp_ge_u32 s24, 4")
    p(";@carry")
    p(f"s_cbranch_scc1 {name}_B")

    BS = 84

    def stage_srds():
        srd(p, XB, 4, 5, 2048 * 1024)
        p("s_cmp_ge_u32 s92x, 4".replace("s92x", "s25"))
        p(f"s_cselect_b32 s{BS}, s10, s8")
        p(f"s_cselect_b32 s{BS+1}, s11, s9")
        p(f"s_and_b32 s{BS+1}, s{BS+1}, 0xffff")
        p(f"s_mov_b32 s{BS+2}, 0x80000")
        p(f"s_mov_b32 s{BS+3}, 0x00020000")

    def s_dmas(s):
        base = (s % NSLOT) * SLOT
        o = []
        for i in range(2):
            o.append([f"s_add_u32 m0, s58, {base + i*1024}", f"s_add_u32 s62, s54, {s*128 + i*4096}",
                      f"buffer_load_dwordx4 v{12+i}, s[{XB}:{XB+3}], s62 offen lds"])
        o.append([f"s_add_u32 m0, s56, {base + 16384}", f"s_add_u32 s62, s55, {s*128}",
                  f"buffer_load_dwordx4 v127, s[{BS}:{BS+3}], s62 offen lds"])
        return o

    c0 = -2.0 * 0.7978845608028654 * LOG2E
    c1 = c0 * 0.044715

    def addrL(dst):
        p(f"v_bfe_u32 v{dst}, v2, 1, 3")
        p(f"v_xor_b32 v{dst}, v{dst}, v3")
        p(f"v_lshlrev_b32 v{dst}, 4, v{dst}")
        p(f"v_lshl_add_u32 v{dst}, v2, 7, v{dst}")

    def vW_calc(dst, t):
        p("s_movk_i32 s53, 3584")
        p(f"v_lshrrev_b32 v{dst}, 3, v1")
        p(f"v_mul_lo_u32 v{dst}, v{dst}, s53")
        p(f"v_bfe_u32 v{t}, v1, 4, 1")
        p(f"v_lshlrev_b32 v{t}, 2, v{t}")
        p(f"v_xor_b32 v{t}, v{t}, v1")
        p(f"v_and_b32 v{t}, 7, v{t}")
        p(f"v_lshl_add_u32 v{dst}, v{t}, 4, v{dst}")

    def udma(un, i, vw):
        base = (U0 + 8192 * i) if un == 0 else ((U1A + 8192 * i) if i < 6 else 8192 * (i - 6))
        return [f"s_add_u32 m0, s56, {base}",
                f"s_add_u32 s62, s57, {i*64*3584 + un*128}",
                f"buffer_load_dwordx4 v{vw}, s[{W1}:{W1+3}], s62 offen lds"]

    def slot_step(s, regs):
        out = []
        if s < 7:
            d = SLOT if (s % NSLOT) != NSLOT - 1 else -(NSLOT - 1) * SLOT
            for r in regs:
                out.append(f"v_add_u32 v{r}, {d}, v{r}" if d > 0 else f"v_subrev_u32 v{r}, {-d}, v{r}")
        return out

    def ffn_setup():
        p("s_lshl_b32 s54, s31, 8")
        p(f"s_add_u32 s54, s54, {M_STM}")
        p("v_lshlrev_b32 v12, 3, v2")
        p("v_add_u32 v12, s54, v12")
        p("ds_read_b64 v[110:111], v12")
        p("v_bfe_u32 v13, v1, 2, 2")
        p("v_lshl_add_u32 v14, v3, 3, v13")
        p("v_lshlrev_b32 v14, 7, v14")
        p("v_bfe_u32 v15, v1, 4, 1")
        p("v_lshlrev_b32 v15, 1, v15")
        p("v_bfe_u32 v12, v1, 1, 1")
        p("v_add_u32 v15, v15, v12")
        p("v_lshrrev_b32 v12, 1, v13")
        p("v_lshl_add_u32 v15, v12, 2, v15")
        p("v_lshl_add_u32 v14, v15, 4, v14")
        p("v_and_b32 v12, 1, v1")
        p("v_lshl_add_u32 v8, v12, 3, v14")
        p("v_xor_b32 v11, 64, v8")
        p(f"v_add_u32 v4, {U0}, v8")
        p(f"v_add_u32 v5, {U0}, v11")
        p(f"v_add_u32 v6, {U1A}, v8")
        p(f"v_add_u32 v7, {U1A}, v11")
        p("v_lshlrev_b32 v9, 4, v1")
        p("v_mov_b32 v104, 0")
        p("v_mov_b32 v105, 0")
        p("v_mov_b32 v106, 0")
        p("v_mov_b32 v107, 0")
        p("v_rcp_f32 v108, v111")
        p("s_mov_b32 exec_hi, 0")
        p("v_cvt_pk_bf16_f32 v104, -v110, -v110")
        p("v_lshrrev_b32 v105, 16, v111")
        p("s_mov_b32 exec_hi, -1")
        p("v_mul_f32 v109, v108, v108")
        p("v_mul_f32 v109, v109, v108")
        p(f"v_mul_f32 v109, {f32(c1)}, v109")
        p(f"v_mul_f32 v108, {f32(c0)}, v108")
        p("v_mov_b32 v110, v111")
        p("s_lshl_b32 s60, s27, 1")
        p("s_lshr_b32 s61, s31, 1")
        p("s_add_u32 s60, s60, s61")
        p(f"s_mul_i32 s60, s60, {NSTEP*2048}")
        p("s_and_b32 s61, s31, 1")
        p("s_lshl_b32 s61, s61, 10")
        p("s_add_u32 s60, s60, s61")
        p(f"s_add_u32 s60, s60, {WS_H}")
        p("v_lshlrev_b32 v10, 3, v2")
        p(f"v_add_u32 v10, {M_CST}, v10")
        p("s_mov_b32 exec_lo, 0")
        p(f"v_mov_b32 v10, {M_ZERO}")
        p("s_mov_b32 exec_lo, -1")
        p(f"v_mov_b32 v{CFR+2}, 0")
        p(f"v_mov_b32 v{CFR+3}, 0")
        p("s_lshl_b32 s63, s29, 13")
        p("s_add_u32 s63, s63, s60")
        p(f"s_add_u32 s63, s63, {64*2048}")

    def poll(lab, masks, tmp=12, addr=8):
        p("s_lshl_b32 s55, s28, 4")
        p(f"v_mov_b32 v{addr}, s55")
        p("s_mov_b32 s62, 0")
        p.label(lab)
        p.nocount()
        p(f"buffer_load_dwordx4 v[{tmp}:{tmp+3}], v{addr}, s[{DBG}:{DBG+3}], 0 offen sc1")
        p("s_waitcnt vmcnt(0)")
        for k in range(4):
            p(f"v_readfirstlane_b32 s{96+k}, v{tmp+k}")
        for k in range(4):
            p(f"s_andn2_b32 s{96+k}, {masks[k]}, s{96+k}")
        p("s_or_b32 s96, s96, s97")
        p("s_or_b32 s98, s98, s99")
        p("s_or_b32 s96, s96, s98")
        p("s_cmp_eq_u32 s96, 0")
        p(f"s_cbranch_scc1 {lab}_done")
        p("s_add_u32 s62, s62, 1")
        p("s_cmp_gt_u32 s62, 100000")
        p(f"s_cbranch_scc1 {lab}_done")
        p("s_sleep 4")
        p(f"s_branch {lab}")
        p.label(lab + "_done")
    ALL1 = ["0x01010101"] * 4

    NB = 5

    def ffn_slots(ti, acc):
        areg = 4 + ti

        def rd(s):
            b = 80 + (s % NB) * 4
            ar, off = areg, s * 2048
            if ti >= 2 and s >= 24:
                ar, off = (8 if ti == 2 else 11), (s - 24) * 2048
            return [f"ds_read_b64_tr_b16 v[{b}:{b+1}], v{ar} offset:{off}",
                    f"ds_read_b64_tr_b16 v[{b+2}:{b+3}], v{ar} offset:{off+512}"]
        pre = []
        for s in range(NB - 1):
            pre += rd(s)
        slots = []
        for s in range(32):
            sl = rd(s + NB - 1) if s + NB - 1 < 32 else []
            b = 80 + (s % NB) * 4
            c = "0" if s == 0 else f"v[{acc}:{acc+15}]"
            sl.append(f"v_mfma_f32_32x32x16_bf16 v[{acc}:{acc+15}], v[{b}:{b+3}], a[{4*s}:{4*s+3}], {c}")
            slots.append(sl)
        return pre, slots

    def ffn_corr(ti, cf):
        return [f"ds_read_b64 v[{cf}:{cf+1}], v10 offset:{ti*256}"]

    def ffn_corr_mfma(acc, cf):
        return [f"v_mfma_f32_32x32x16_bf16 v[{acc}:{acc+15}], v[{cf}:{cf+3}], v[104:107], v[{acc}:{acc+15}]"]

    def ffn_epi(ti, acc, tmp):
        out = []
        for g in range(4):
            js = range(4 * g, 4 * g + 4)
            for j in js: out.append(f"v_mul_f32 v{tmp+j}, v{acc+j}, v{acc+j}")
            for j in js: out.append(f"v_fma_f32 v{tmp+j}, v{tmp+j}, v109, v108")
            for j in js: out.append(f"v_mul_f32 v{tmp+j}, v{tmp+j}, v{acc+j}")
            for j in js: out.append(f"v_exp_f32 v{tmp+j}, v{tmp+j}")
            for j in js: out.append(f"v_fma_f32 v{tmp+j}, v{tmp+j}, v110, v110")
            for j in js: out.append(f"v_rcp_f32 v{tmp+j}, v{tmp+j}")
            for j in js: out.append(f"v_mul_f32 v{tmp+j}, v{tmp+j}, v{acc+j}")
            out.append(f"v_cvt_pk_bf16_f32 v{tmp+4*g}, v{tmp+4*g}, v{tmp+4*g+1}")
            out.append(f"v_cvt_pk_bf16_f32 v{tmp+4*g+1}, v{tmp+4*g+2}, v{tmp+4*g+3}")
            if g & 1:
                u = g >> 1
                out.append(f"v_mov_b32 v{tmp+8*u+2}, v{tmp+8*u+4}")
                out.append(f"v_mov_b32 v{tmp+8*u+3}, v{tmp+8*u+5}")
                out.append(f"s_add_u32 s61, s63, {(2*ti+u)*2048}")
                out.append(f"buffer_store_dwordx4 v[{tmp+8*u}:{tmp+8*u+3}], v9, s[{WS}:{WS+3}], s61 offen {stflag}")
        return out

    def nonce_bump(lab):
        p("s_cmp_lg_u32 s24, 1")
        p(f"s_cbranch_scc1 {lab}")
        p("s_waitcnt vmcnt(0)")
        p("v_readfirstlane_b32 s55, v123")
        p("s_cmp_lg_u32 s55, 255")
        p(f"s_cbranch_scc1 {lab}")
        p("s_mov_b64 exec, 1")
        p(f"v_mov_b32 v122, s{NONCE}")
        p(f"v_mov_b32 v123, {WS_T}")
        p(f"buffer_store_dword v122, v123, s[{WS}:{WS+3}], 0 offen")
        p("s_mov_b64 exec, -1")
        p.label(lab)

    def stamp_out():
        p("s_waitcnt vmcnt(0)")
        stamp()
        p(f"v_writelane_b32 v{STV}, s80, 0")
        p(f"v_writelane_b32 v{STV}, s90, 62")
        p("s_memrealtime s[90:91]")
        p("s_waitcnt lgkmcnt(0)")
        p(f"v_writelane_b32 v{STV}, s90, 63")
        p("s_lshl_b32 s19, s2, 3")
        p("s_add_u32 s19, s19, s92")
        p("s_lshl_b32 s19, s19, 8")
        p("s_add_u32 s19, s19, 0x4000000")
        add64(p, 72, 73, 22, 23, "s19")
        srd(p, 76, 72, 73, 256)
        p("v_lshlrev_b32 v72, 2, v1")
        p(f"buffer_store_dword v{STV}, v72, s[76:79], 0 offen")

    p("s_waitcnt lgkmcnt(0)")
    p(f"s_mov_b32 s53, {WS_T}")
    p(f"s_load_dword s{NONCE}, s[22:23], s53")
    stage_srds()
    for d in s_dmas(0): emit(d)
    p.mark("st0")
    srd(p, 64, 12, 13, 1024)
    srd(p, 68, 14, 15, 1024)
    srd(p, 72, 6, 7, 1024)
    p("s_lshl_b32 s53, s28, 6")
    p("v_lshlrev_b32 v15, 1, v2")
    p("buffer_load_ushort v112, v15, s[64:67], s53 offen")
    p("buffer_load_ushort v113, v15, s[68:71], s53 offen")
    p("buffer_load_ushort v114, v15, s[72:75], s53 offen")
    for d in s_dmas(1): emit(d)
    p.mark("st1")
    for d in s_dmas(2): emit(d)
    p.mark("st2")
    srd(p, W1, 16, 17, 512 * 3584)
    vW_calc(14, 15)
    if False:
        p("v_lshrrev_b32 v16, 1, v1")
        p("s_movk_i32 s53, 3584")
        p("v_mul_lo_u32 v16, v16, s53")
        p("v_and_b32 v17, 1, v1")
        p("v_lshl_add_u32 v16, v17, 7, v16")
        p("s_and_b32 s59, s27, 3")
        p("s_lshl_b32 s59, s59, 2")
        p("s_add_u32 s59, s59, s31")
        p(f"s_mul_i32 s59, s59, {32*3584}")
        p("s_lshl_b32 s60, s29, 7")
        p("s_add_u32 s59, s59, s60")
        p(f"buffer_load_dword v127, v16, s[{W1}:{W1+3}], s59 offen")
    addrL(15)
    for u in range(4):
        p(f"v_xor_b32 v{8+u}, {32*u}, v15")
        p(f"v_add_u32 v{4+u}, s52, v{8+u}")
        p(f"v_add_u32 v{8+u}, 16384, v{8+u}")
    srd(p, WS, 22, 23, WS_END2)
    srd(p, DBG, 20, 21, 256)
    srd(p, B1, 18, 19, 3584)
    p(f"s_add_u32 s{NONCE}, s{NONCE}, 1")
    A_RE, A_IM, A16_RE, A16_IM, A128_RE, A128_IM, AS_RE, AS_IM, C_RE, C_IM = 116, 117, 118, 119, 120, 121, 122, 123, 124, 125

    def ssm_params():
        o = []
        o += ["v_lshlrev_b32 v112, 16, v112", "v_lshlrev_b32 v113, 16, v113", "v_lshlrev_b32 v114, 16, v114",
              f"v_mul_f32 v114, {f32(LOG2E)}, v114", "v_exp_f32 v114, v114",
              "v_cvt_pk_bf16_f32 v114, v114, v114", "v_and_b32 v114, 0xffff0000, v114",
              "v_mul_f32 v115, v114, v112", "v_mul_f32 v127, v114, v113",
              f"v_mul_f32 v115, {f32(LOG2E)}, v115", f"v_mul_f32 v127, {f32(0.15915494309189535)}, v127"]

        def cpow(n_txt, dre, dim):
            return [f"v_mul_f32 v15, {n_txt}, v115", f"v_mul_f32 v{dim}, {n_txt}, v127", "v_exp_f32 v15, v15",
                    f"v_fract_f32 v{dim}, v{dim}", f"v_cos_f32 v{dre}, v{dim}", f"v_sin_f32 v{dim}, v{dim}",
                    f"v_mul_f32 v{dre}, v{dre}, v15", f"v_mul_f32 v{dim}, v{dim}, v15"]
        o += cpow("1.0", A_RE, A_IM)
        o += cpow(f32(16.0), A16_RE, A16_IM)
        o += cpow(f32(128.0), A128_RE, A128_IM)
        o += ["s_lshl_b32 s54, s31, 1", "v_add_u32 v114, s54, v3", "v_cvt_f32_u32 v114, v114",
              f"v_mul_f32 v114, {f32(16.0)}, v114"]
        o += cpow("v114", AS_RE, AS_IM)
        o += [f"v_add_f32 v114, -1.0, v{A_RE}", "v_mul_f32 v15, v112, v112", "v_fmac_f32 v15, v113, v113",
              "v_rcp_f32 v15, v15", "v_add_f32 v15, v15, v15",
              f"v_mul_f32 v{C_RE}, v114, v112", f"v_fmac_f32 v{C_RE}, v{A_IM}, v113",
              f"v_mul_f32 v{C_IM}, v{A_IM}, v112", f"v_fma_f32 v{C_IM}, -v114, v113, v{C_IM}",
              f"v_mul_f32 v{C_RE}, v{C_RE}, v15", f"v_mul_f32 v{C_IM}, v{C_IM}, v15"]
        return o

    def a_reads(s):
        bb = 48 + 32 * (s & 1)
        o = []
        for u in range(4):
            o.append(f"ds_read_b128 a[{16*s+4*u}:{16*s+4*u+3}], v{4+u}")
            o.append(f"ds_read_b128 v[{bb+8*u}:{bb+8*u+3}], v{8+u}")
            o.append(f"ds_read_b128 v[{bb+8*u+4}:{bb+8*u+7}], v{8+u} offset:4096")
        return o

    def a_mfma(s):
        bb = 48 + 32 * (s & 1)
        o = []
        for u in range(4):
            c0_ = "0" if (s == 0 and u == 0) else "v[16:31]"
            c1_ = "0" if (s == 0 and u == 0) else "v[32:47]"
            o.append(f"v_mfma_f32_32x32x16_bf16 v[16:31], a[{16*s+4*u}:{16*s+4*u+3}], v[{bb+8*u}:{bb+8*u+3}], {c0_}")
            o.append(f"v_mfma_f32_32x32x16_bf16 v[32:47], a[{16*s+4*u}:{16*s+4*u+3}], v[{bb+8*u+4}:{bb+8*u+7}], {c1_}")
        return o

    USCHED_A = {5: [(0, 0), (0, 1), (0, 2)], 6: [(0, 3), (0, 4), (0, 5)], 7: [(0, 6), (0, 7), "u0"]}
    USCHED_B = USCHED_A

    def usched_emit(sched, ep, vw, mf):
        mf = list(mf)
        for it in sched.get(ep, []):
            if it == "u0":
                p.mark("u0")
                continue
            if mf: p(mf.pop(0))
            if mf: p(mf.pop(0))
            emit(udma(it[0], it[1], vw))
            if ep == 5:
                stamp(4)
        for t in mf:
            p(t)
        if ep == 5:
            stamp(4)

    SSCHED = {0: [3], 1: [4], 2: [5], 3: [6], 4: [7]}

    def dma_plan(sched, ep, vw):
        o = []
        for st_ in SSCHED.get(ep, []):
            o += s_dmas(st_)
            o.append(f"st{st_}")
        for it in sched.get(ep, []):
            o.append("u0" if it == "u0" else udma(it[0], it[1], vw))
        return o

    def emit_plan(plan, mf, k=2):
        mf = list(mf)
        for it in plan:
            if isinstance(it, str):
                p.mark(it)
                continue
            emit(mf[:k]); mf = mf[k:]
            emit(it)
        emit(mf)

    for s in range(8):
        if s >= 5: stamp(3)
        p.waitvm(f"st{s}")
        if s >= 5: stamp(3)
        bar()
        rd = a_reads(s)
        mf = a_mfma(s - 1) if s >= 1 else []
        st = slot_step(s, range(4, 12))
        seq = []
        for k in range(4):
            seq += mf[k:k+1] + rd[3 * k:3 * k + 3]
        emit(seq + st)
        emit_plan(dma_plan(USCHED_A, s, 14), mf[4:], 1)
        if s == 5:
            emit(ssm_params())
        if s == 7:
            emit(a_mfma(7))
    p.waitvm("u0")
    bar(1)
    p("v_and_b32 v12, 3, v1")
    p("v_lshlrev_b32 v12, 8, v12")
    p(f"v_add_u32 v12, {M_ZERO}, v12")
    p("v_mov_b32 v64, 0")
    p("v_mov_b32 v65, 0")
    p("ds_write_b64 v12, v[64:65]")
    p(f"v_mov_b32 v12, {M_FLG}")
    p("ds_write_b32 v12, v64")
    p("s_lshl_b32 s54, s31, 8")
    p(f"s_add_u32 s54, s54, {M_STM}")
    p("v_lshlrev_b32 v12, 3, v2")
    p("v_add_u32 v12, s54, v12")
    p("ds_read_b32 v48, v12")
    p("v_lshlrev_b32 v13, 2, v2")
    p(f"v_add_u32 v13, {M_CSB}, v13")
    p("ds_read_b32 v49, v13")
    p("ds_read_b32 v50, v13 offset:128")
    p("s_lshl_b32 s54, s31, 7")
    p(f"s_add_u32 s54, s54, {M_STR}")
    p("v_lshlrev_b32 v15, 6, v3")
    p("v_add_u32 v15, s54, v15")
    for i in range(4):
        p(f"ds_read_b128 v[{80+4*i}:{83+4*i}], v15 offset:{16*i}")
    for i in range(52, 64):
        p(f"v_mov_b32 v{i}, 0")
    p("v_cvt_pk_bf16_f32 v51, v49, v50")
    p("v_lshlrev_b32 v64, 16, v51")
    p("v_and_b32 v65, 0xffff0000, v51")
    p("v_sub_f32 v64, v49, v64")
    p("v_sub_f32 v65, v50, v65")
    p("s_mov_b32 exec_hi, 0")
    p("v_cvt_pk_bf16_f32 v52, -v48, -v48")
    p("v_cvt_pk_bf16_f32 v56, v49, v64")
    p("v_cvt_pk_bf16_f32 v60, v50, v65")
    p("s_mov_b32 exec_hi, -1")
    p("v_mfma_f32_32x32x16_bf16 v[16:31], v[52:55], v[56:59], v[16:31]")
    p("v_mfma_f32_32x32x16_bf16 v[32:47], v[52:55], v[60:63], v[32:47]")
    for r in range(16):
        p(f"v_mul_f32 v{48+2*r}, v{16+r}, v{80+r}")
        p(f"v_mul_f32 v{49+2*r}, v{32+r}, v{80+r}")

    def cstep(d, s_, a, w, t=98):
        p(f"v_pk_fma_f32 v[{t}:{t+1}], v[{a}:{a+1}], v[{s_}:{s_+1}], v[{w}:{w+1}] op_sel:[0,0,0] op_sel_hi:[0,1,1]")
        p(f"v_pk_fma_f32 v[{d}:{d+1}], v[{a}:{a+1}], v[{s_}:{s_+1}], v[{t}:{t+1}] op_sel:[1,1,0] op_sel_hi:[1,0,1] neg_lo:[1,0,0]")
    cstep(96, 48, A_RE, 50)
    for r in range(2, 16):
        cstep(96, 96, A_RE, 48 + 2 * r)
    p("s_lshl_b32 s54, s31, 1")
    p("v_add_u32 v100, s54, v3")
    p("v_lshlrev_b32 v13, 8, v100")
    p("v_lshl_add_u32 v13, v2, 3, v13")
    p(f"v_add_u32 v13, {M_E}, v13")
    p("ds_write_b64 v13, v[96:97]")
    p("s_waitcnt lgkmcnt(0)")
    bar(1)
    p("v_lshlrev_b32 v13, 3, v2")
    p(f"v_add_u32 v13, {M_E}, v13")
    for s in range(8):
        p(f"ds_read_b64 v[{80+2*s}:{81+2*s}], v13 offset:{256*s}")
    for s in range(1, 8):
        p(f"v_cmp_eq_u32 s[{64+2*(s-1)}:{65+2*(s-1)}], {s}, v100")
    p("v_mov_b32 v112, 0")
    p("v_mov_b32 v113, 0")
    cur = 80
    for s in range(1, 8):
        m = 64 + 2 * (s - 1)
        p(f"v_cndmask_b32 v112, v112, v{cur}, s[{m}:{m+1}]")
        p(f"v_cndmask_b32 v113, v113, v{cur+1}, s[{m}:{m+1}]")
        cstep(96, cur, A16_RE, 80 + 2 * s)
        cur = 96
    skip = name + "_nopub"
    p("s_cmp_lg_u32 s24, 0")
    p(f"s_cbranch_scc1 {skip}")
    p("s_lshl_b32 s54, s27, 4")
    p("s_add_u32 s54, s54, s28")
    p("s_lshl_b32 s54, s54, 9")
    p(f"s_add_u32 s54, s54, {WS_E2}")
    p("v_lshlrev_b32 v13, 4, v2")
    p("v_mov_b32 v84, v96")
    p(f"v_mov_b32 v85, s{NONCE}")
    p("v_mov_b32 v86, v97")
    p(f"v_mov_b32 v87, s{NONCE}")
    p("s_mov_b32 exec_hi, 0")
    p.nocount()
    p(f"buffer_store_dwordx4 v[84:87], v13, s[{WS}:{WS+3}], s54 offen sc1")
    p("s_mov_b32 exec_hi, -1")
    p(";@carry")
    p.label(skip)
    stamp()
    ffn_setup()
    pre, slots = ffn_slots(1, 16)
    emit(pre)
    emit(weave(slots[:24], [], 0))
    p("s_barrier")
    emit(weave(slots[24:], ffn_corr(1, CFR), 1))
    emit(ffn_corr_mfma(16, CFR))
    def e_loads():
        p("v_lshlrev_b32 v12, 13, v3")
        p("v_lshl_add_u32 v12, v2, 4, v12")
        p("s_lshl_b32 s54, s28, 9")
        p(f"s_add_u32 s54, s54, {WS_E2}")
        for i in range(8):
            p.nocount()
            p(f"buffer_load_dwordx4 a[{4*i}:{4*i+3}], v12, s[{WS}:{WS+3}], s54 offen sc1")
            p("s_add_u32 s54, s54, 16384")
    p("s_cmp_lg_u32 s24, 3")
    p(";@carry")
    p(f"s_cbranch_scc1 {name}_noe")
    p("s_nop 7")
    e_loads()
    p(";@carry")
    p.label(name + "_noe")
    stamp(3)
    emit(ffn_epi(1, 16, 32))
    stamp()
    waitl = name + "_waitl"
    p("s_cmp_lg_u32 s24, 3")
    p(f"s_cbranch_scc1 {waitl}")
    p("s_mov_b32 s62, 0")
    p.label(name + "_echk")
    p("s_waitcnt vmcnt(0)")
    p("v_mov_b32 v16, 0")
    for i in range(8):
        p(f"s_sub_i32 s55, s27, {2*i}")
        p("s_max_i32 s55, s55, 0")
        p(f"v_cmp_gt_u32 s[64:65], s55, v3")
        p(f"v_accvgpr_read_b32 v17, a{4*i+1}")
        p(f"v_accvgpr_read_b32 v18, a{4*i+3}")
        p(f"v_xor_b32 v17, s{NONCE}, v17")
        p(f"v_xor_b32 v18, s{NONCE}, v18")
        p("v_or_b32 v17, v17, v18")
        p("v_cndmask_b32 v17, 0, v17, s[64:65]")
        p("v_or_b32 v16, v16, v17")
    p("v_cmp_ne_u32 s[64:65], 0, v16")
    p("s_cmp_eq_u64 s[64:65], 0")
    p(f"s_cbranch_scc1 {name}_eok")
    p("s_add_u32 s62, s62, 1")
    p("s_cmp_gt_u32 s62, 100000")
    p(f"s_cbranch_scc1 {name}_eok")
    p("s_sleep 2")
    e_loads()
    p(";@carry")
    p(f"s_branch {name}_echk")
    p.label(name + "_eok")
    p("v_lshlrev_b32 v14, 8, v3")
    p("v_lshl_add_u32 v14, v2, 3, v14")
    p(f"v_add_u32 v14, {M_EJ}, v14")
    for i in range(8):
        p(f"ds_write_b32 v14, a{4*i} offset:{512*i}")
        p(f"ds_write_b32 v14, a{4*i+2} offset:{512*i+4}")
    p(f"v_mov_b32 v12, {M_FLG}")
    p("v_mov_b32 v13, 1")
    p("s_waitcnt lgkmcnt(0)")
    p("ds_write_b32 v12, v13")
    p("s_waitcnt lgkmcnt(0)")
    p(f"s_branch {waitl}_done")
    p.label(waitl)
    p(f"v_mov_b32 v12, {M_FLG}")
    p("s_mov_b32 s62, 0")
    p.label(waitl + "_l")
    p("ds_read_b32 v13, v12")
    p("s_waitcnt lgkmcnt(0)")
    p("v_readfirstlane_b32 s55, v13")
    p("s_cmp_eq_u32 s55, 1")
    p(f"s_cbranch_scc1 {waitl}_done")
    p("s_add_u32 s62, s62, 1")
    p("s_cmp_gt_u32 s62, 2000000")
    p(f"s_cbranch_scc1 {waitl}_done")
    p("s_sleep 1")
    p(f"s_branch {waitl}_l")
    p.label(waitl + "_done")
    stamp()
    p("v_lshlrev_b32 v13, 3, v2")
    p(f"v_add_u32 v13, {M_EJ}, v13")
    for j in range(15):
        p(f"ds_read_b64 v[{16+2*j}:{17+2*j}], v13 offset:{256*j}")
    p("v_mov_b32 v96, 0")
    p("v_mov_b32 v97, 0")
    p("s_lshl_b32 s54, s31, 12")
    p(f"s_add_u32 s54, s54, {M_TB}")
    p("v_lshrrev_b32 v12, 2, v2")
    p("v_lshlrev_b32 v13, 1, v3")
    p("v_xor_b32 v12, v12, v13")
    p("v_and_b32 v13, 3, v2")
    p("v_lshlrev_b32 v13, 2, v13")
    p("v_lshl_add_u32 v13, v3, 9, v13")
    p("v_add_u32 v13, s54, v13")
    K0S = [0, 1, 4, 5]
    for i, k0 in enumerate(K0S):
        p(f"v_xor_b32 v14, {k0}, v12")
        p(f"v_lshl_add_u32 v{4+i}, v14, 4, v13")
    p("s_waitcnt lgkmcnt(0)")
    hdone = name + "_hdone"
    for j in range(15):
        p(f"s_cmp_le_u32 s27, {j}")
        p(f"s_cbranch_scc1 {hdone}")
        cstep(96, 96, A128_RE, 16 + 2 * j)
    p.label(hdone)
    cstep(96, 96, AS_RE, 112)
    for r in range(16):
        a, b = r >> 2, r & 3
        k0 = 4 * (a & 1) + (b >> 1)
        cstep(96, 96, A_RE, 48 + 2 * r)
        p(f"v_pk_mul_f32 v[84:85], v[{C_RE}:{C_RE+1}], v[96:97] op_sel:[0,0] op_sel_hi:[0,1]")
        p(f"v_pk_fma_f32 v[84:85], v[{C_RE}:{C_RE+1}], v[96:97], v[84:85] op_sel:[1,1,0] op_sel_hi:[1,0,1] neg_lo:[1,0,0]")
        p(f"v_cvt_pk_bf16_f32 v{16+r}, v84, -v85")
        p(f"ds_write_b32 v{4+K0S.index(k0)}, v{16+r} offset:{(8*a+b)*128}")
    addrL(12)
    p("v_add_u32 v12, s54, v12")
    p("s_waitcnt lgkmcnt(0)")
    for u in range(4):
        p(f"v_xor_b32 v13, {32*u}, v12")
        p(f"ds_read_b128 v[{64+4*u}:{67+4*u}], v13")
    p("s_lshl_b32 s61, s28, 13")
    p("s_add_u32 s61, s61, s60")
    for u in range(4):
        p(f"buffer_store_dwordx4 v[{64+4*u}:{67+4*u}], v9, s[{WS}:{WS+3}], s61 offen {stflag}")
        p("s_add_u32 s61, s61, 2048")
    if stamps:
        stamp_out()
    p("s_endpgm")

    p(";@carry")
    p.label(name + "_B")
    stn["i"] = 1
    p("s_sub_u32 s24, s24, 4")
    p(f"s_load_dwordx4 s[64:67], s[0:1], {KA['cre']}")
    p(f"s_load_dwordx2 s[68:69], s[0:1], {KA['w2']}")
    p("s_waitcnt lgkmcnt(0)")
    p(f"s_mov_b32 s53, {WS_T}")
    p(f"s_load_dword s{NONCE}, s[22:23], s53")
    stage_srds()
    for d in s_dmas(0): emit(d)
    p.mark("st0")
    srd(p, W1, 16, 17, 512 * 3584)
    p("s_movk_i32 s53, 3584")
    p("v_lshrrev_b32 v19, 2, v1")
    p("v_mul_lo_u32 v19, v19, s53")
    p("v_and_b32 v20, 3, v1")
    p("v_lshl_add_u32 v19, v20, 4, v19")
    p("s_lshl_b32 s59, s27, 5")
    p("s_mul_i32 s59, s59, 3584")
    p("s_lshl_b32 s60, s29, 7")
    p("s_add_u32 s59, s59, s60")
    p("s_lshl_b32 s60, s24, 6")
    p("s_add_u32 s59, s59, s60")
    p(f"buffer_load_dwordx4 v[96:99], v19, s[{W1}:{W1+3}], s59 offen")
    p(f"s_add_u32 s59, s59, {16*3584}")
    p(f"buffer_load_dwordx4 v[100:103], v19, s[{W1}:{W1+3}], s59 offen")
    for d in s_dmas(1): emit(d)
    p.mark("st1")
    for d in s_dmas(2): emit(d)
    p.mark("st2")
    vW_calc(14, 15)
    srd(p, WS, 22, 23, WS_END2)
    srd(p, DBG, 20, 21, 256)
    srd(p, B1, 18, 19, 3584)
    p(f"s_add_u32 s{NONCE}, s{NONCE}, 1")
    addrL(15)
    for u in range(4):
        p(f"v_xor_b32 v{4+u}, {32*u}, v15")
        p(f"v_add_u32 v{4+u}, s52, v{4+u}")
    p("v_and_b32 v19, 15, v1")
    p("v_lshrrev_b32 v20, 4, v1")
    p("v_bfe_u32 v15, v1, 1, 3")
    p("v_xor_b32 v20, v20, v15")
    p("v_lshlrev_b32 v20, 4, v20")
    p("v_lshl_add_u32 v20, v19, 7, v20")
    p("v_add_u32 v8, s52, v20")
    p("v_xor_b32 v9, 64, v8")
    p("s_lshl_b32 s59, s24, 11")
    p("s_add_u32 s59, s59, 16384")
    p("v_add_u32 v10, s59, v20")
    p("v_xor_b32 v11, 64, v10")
    for i in range(4):
        p(f"v_mov_b32 v{92+i}, 0x3f803f80")

    def b_reads(s):
        fb = 44 + 24 * (s & 1)
        o = [f"ds_read_b128 v[{fb}:{fb+3}], v8", f"ds_read_b128 v[{fb+4}:{fb+7}], v9",
             f"ds_read_b128 v[{fb+8}:{fb+11}], v8 offset:2048", f"ds_read_b128 v[{fb+12}:{fb+15}], v9 offset:2048",
             f"ds_read_b128 v[{fb+16}:{fb+19}], v10", f"ds_read_b128 v[{fb+20}:{fb+23}], v11"]
        for u in range(4):
            o.append(f"ds_read_b128 a[{16*s+4*u}:{16*s+4*u+3}], v{4+u}")
        return o

    def b_mfma(s):
        z = (s == 0)
        fb = 44 + 24 * (s & 1)
        M = "v_mfma_f32_16x16x32_bf16"
        f = lambda k: f"v[{fb+4*k}:{fb+4*k+3}]"
        O = "v[92:95]"
        return [
            f"{M} v[24:27], {f(0)}, {f(0)}, {'0' if z else 'v[24:27]'}",
            f"{M} v[28:31], {f(2)}, {f(2)}, {'0' if z else 'v[28:31]'}",
            f"{M} v[32:35], {f(0)}, {O}, {'0' if z else 'v[32:35]'}",
            f"{M} v[36:39], {f(2)}, {O}, {'0' if z else 'v[36:39]'}",
            f"{M} v[40:43], {f(4)}, {O}, {'0' if z else 'v[40:43]'}",
            f"{M} v[24:27], {f(1)}, {f(1)}, v[24:27]",
            f"{M} v[28:31], {f(3)}, {f(3)}, v[28:31]",
            f"{M} v[32:35], {f(1)}, {O}, v[32:35]",
            f"{M} v[36:39], {f(3)}, {O}, v[36:39]",
            f"{M} v[40:43], {f(5)}, {O}, v[40:43]",
        ]

    def b_epoch(s, extra=None):
        emit(b_reads(s))
        emit(slot_step(s, range(4, 12)))
        if extra: extra()
        emit_plan(dma_plan(USCHED_B, s, 14), b_mfma(s - 1) if s >= 1 else [], 2)

    p.waitvm("st0", lgkm=False); bar()
    b_epoch(0)
    p.waitvm("st1"); bar()
    b_epoch(1)
    T = [104 + 2 * k for k in range(8)]
    for q in range(4):
        p(f"v_lshlrev_b32 v{T[2*q]}, 16, v{96+q}")
        p(f"v_and_b32 v{T[2*q+1]}, 0xffff0000, v{96+q}")
        p(f"v_lshlrev_b32 v15, 16, v{100+q}")
        p(f"v_and_b32 v{100+q}, 0xffff0000, v{100+q}")
        p(f"v_add_f32 v{T[2*q]}, v{T[2*q]}, v15")
        p(f"v_add_f32 v{T[2*q+1]}, v{T[2*q+1]}, v{100+q}")
    for ror in (4, 8):
        for k in range(8):
            p(f"v_add_f32_dpp v{T[k]}, v{T[k]}, v{T[k]} row_ror:{ror} row_mask:0xf bank_mask:0xf")
    for sw in ("v_permlane16_swap_b32", "v_permlane32_swap_b32"):
        for k in range(8):
            p(f"v_mov_b32 v{96+k}, v{T[k]}")
        for k in range(8):
            p(f"{sw} v{T[k]}, v{96+k}")
        for k in range(8):
            p(f"v_add_f32 v{T[k]}, v{T[k]}, v{96+k}")
    for k in range(8):
        p(f"v_mov_b32 v{T[k]+1}, s{NONCE}")
    p("s_lshl_b32 s59, s28, 4")
    p("s_add_u32 s59, s59, s27")
    p("s_lshl_b32 s60, s59, 10")
    p("s_lshl_b32 s59, s24, 8")
    p("s_add_u32 s60, s60, s59")
    p(f"s_add_u32 s60, s60, {WS_CSP}")
    p("v_and_b32 v15, 3, v1")
    p("v_lshlrev_b32 v15, 6, v15")
    p("s_mov_b64 exec, 0xf")
    for q in range(4):
        p(f"buffer_store_dwordx4 v[{104+4*q}:{107+4*q}], v15, s[{WS}:{WS+3}], s60 offen offset:{16*q} sc1")
    p("s_mov_b64 exec, -1")
    p.waitvm("st2"); bar()
    b_epoch(2)
    p.waitvm("st3"); bar()
    b_epoch(3)
    p.waitvm("st4"); bar()
    b_epoch(4)
    stamp(3); p.waitvm("st5"); stamp(3); bar()
    def csp_loads(nc=False):
        p("v_lshrrev_b32 v19, 4, v1")
        p("v_and_b32 v20, 15, v1")
        p("v_lshlrev_b32 v21, 10, v19")
        p("v_lshl_add_u32 v21, v20, 4, v21")
        p("s_lshl_b32 s59, s28, 14")
        p("s_lshl_b32 s60, s24, 8")
        p("s_add_u32 s59, s59, s60")
        p(f"s_add_u32 s59, s59, {WS_CSP}")
        for i in range(4):
            if nc: p.nocount()
            p(f"buffer_load_dwordx4 v[{104+4*i}:{107+4*i}], v21, s[{WS}:{WS+3}], s59 offen sc1")
            p("s_add_u32 s59, s59, 4096")
    def csp_first():
        csp_loads()
        p("s_lshl_b32 s59, s29, 7")
        p("s_lshl_b32 s60, s24, 6")
        p("s_add_u32 s59, s59, s60")
        p("v_and_b32 v21, 15, v1")
        p("v_lshlrev_b32 v21, 2, v21")
        p(f"buffer_load_dword v120, v21, s[{B1}:{B1+3}], s59 offen")
    b_epoch(5)
    stamp(3); p.waitvm("st6"); stamp(3); bar()
    b_epoch(6, csp_first)
    stamp(3); p.waitvm("st7"); stamp(3); bar()
    b_epoch(7)
    emit(b_mfma(7))
    p("v_and_b32 v19, 3, v1")
    p("v_cmp_eq_u32 s[76:77], 1, v19")
    p("v_cmp_eq_u32 s[78:79], 2, v19")
    p("v_cmp_eq_u32 s[82:83], 3, v19")
    for (base, dst) in ((24, 96), (28, 97), (32, 98), (36, 99)):
        p(f"v_cndmask_b32 v{dst}, v{base}, v{base+1}, s[76:77]")
        p(f"v_cndmask_b32 v{dst}, v{dst}, v{base+2}, s[78:79]")
        p(f"v_cndmask_b32 v{dst}, v{dst}, v{base+3}, s[82:83]")
    for rt in range(2):
        q, sm = 96 + rt, 98 + rt
        p(f"v_mul_f32 v{sm}, 0x3b000000, v{sm}")
        p(f"v_mul_f32 v{q}, 0x3b000000, v{q}")
        p(f"v_fma_f32 v{q}, -v{sm}, v{sm}, v{q}")
        p(f"v_max_f32 v{q}, 0, v{q}")
        p(f"v_cvt_pk_bf16_f32 v{sm}, v{sm}, v{q}")
        p(f"v_and_b32 v{q}, 0xffff0000, v{sm}")
        p(f"v_lshlrev_b32 v{sm}, 16, v{sm}")
        p(f"v_add_f32 v{q}, 0x3727c5ac, v{q}")
        p(f"v_cvt_pk_bf16_f32 v{q}, v{q}, v{q}")
        p(f"v_and_b32 v{q}, 0xffff0000, v{q}")
        p(f"v_sqrt_f32 v{q}, v{q}")
        p(f"v_cvt_pk_bf16_f32 v{q}, v{q}, v{q}")
        p(f"v_and_b32 v{q}, 0xffff0000, v{q}")
        p(f"v_rcp_f32 v{100+rt}, v{q}")
    p("v_lshrrev_b32 v19, 4, v1")
    p("v_bfe_u32 v20, v1, 2, 2")
    p("v_cmp_eq_u32 vcc, v19, v20")
    p("s_and_saveexec_b64 s[70:71], vcc")
    p("v_and_b32 v19, 15, v1")
    p("s_lshl_b32 s59, s24, 8")
    p(f"s_add_u32 s59, s59, {M_STM}")
    p("v_lshlrev_b32 v20, 3, v19")
    p("v_add_u32 v20, s59, v20")
    p("v_mov_b32 v16, v98"); p("v_mov_b32 v17, v96")
    p("v_mov_b32 v22, v99"); p("v_mov_b32 v23, v97")
    p("ds_write_b64 v20, v[16:17]")
    p("ds_write_b64 v20, v[22:23] offset:128")
    p("v_bfe_u32 v20, v19, 2, 1")
    p("v_lshlrev_b32 v20, 4, v20")
    p("v_lshrrev_b32 v21, 3, v19")
    p("v_lshl_add_u32 v20, v21, 2, v20")
    p("v_and_b32 v21, 3, v19")
    p("v_add_u32 v20, v20, v21")
    p("s_lshl_b32 s59, s24, 7")
    p(f"s_add_u32 s59, s59, {M_STR}")
    p("v_lshlrev_b32 v21, 2, v20")
    p("v_add_u32 v21, s59, v21")
    p("ds_write_b32 v21, v100")
    p("ds_write_b32 v21, v101 offset:32")
    p("s_cmp_lg_u32 s28, 0")
    p(";@carry")
    p(f"s_cbranch_scc1 {name}_nogst")
    p("v_mov_b32 v17, v100")
    p("v_mov_b32 v23, v101")
    p("s_lshl_b32 s59, s27, 10")
    p("s_lshl_b32 s60, s24, 8")
    p("s_add_u32 s59, s59, s60")
    p(f"s_add_u32 s59, s59, {WS_STATS}")
    p("v_lshlrev_b32 v21, 3, v20")
    p.nocount()
    p(f"buffer_store_dwordx2 v[16:17], v21, s[{WS}:{WS+3}], s59 offen")
    p.nocount()
    p(f"buffer_store_dwordx2 v[22:23], v21, s[{WS}:{WS+3}], s59 offen offset:64")
    p(";@carry")
    p.label(name + "_nogst")
    p("s_mov_b64 exec, s[70:71]")
    p("v_and_b32 v19, 15, v1")
    p("v_cmp_eq_u32 vcc, 0, v19")
    p("s_and_saveexec_b64 s[70:71], vcc")
    p("v_and_b32 v19, 48, v1")
    p("s_lshl_b32 s59, s24, 6")
    p(f"s_add_u32 s59, s59, {M_CSB}")
    p("v_add_u32 v19, s59, v19")
    p("ds_write_b128 v19, v[40:43]")
    p("s_mov_b64 exec, s[70:71]")
    p.waitvm("u0")
    bar(1)
    p("s_lshl_b32 s56, s24, 14")
    p(f"s_add_u32 s56, s56, {U1A}")
    p("s_cmp_eq_u32 s24, 3")
    p("s_cselect_b32 s56, 0, s56")
    p(f"s_mul_i32 s57, s24, {128*3584}")
    p("s_lshl_b32 s53, s29, 7")
    p("s_add_u32 s57, s57, s53")
    p("s_add_u32 s57, s57, 128")
    for i in range(16):
        p(f"s_add_u32 m0, s56, {1024*i}")
        p(f"s_add_u32 s62, s57, {i*8*3584}")
        p(f"buffer_load_dwordx4 v14, s[{W1}:{W1+3}], s62 offen lds")
        if i == 7:
            bar(1)
    p("s_mov_b32 s62, 0")
    p.label(name + "_cchk")
    for i in range(4):
        p(f"v_xor_b32 v{105+4*i}, s{NONCE}, v{105+4*i}")
        p(f"v_xor_b32 v{107+4*i}, s{NONCE}, v{107+4*i}")
    p("v_or3_b32 v24, v105, v107, v109")
    p("v_or3_b32 v25, v111, v113, v115")
    p("v_or3_b32 v24, v24, v117, v119")
    p("v_or_b32 v24, v24, v25")
    p("v_cmp_ne_u32 s[96:97], 0, v24")
    p("s_cmp_eq_u64 s[96:97], 0")
    p(f"s_cbranch_scc1 {name}_cok")
    p("s_add_u32 s62, s62, 1")
    p("s_cmp_gt_u32 s62, 100000")
    p(f"s_cbranch_scc1 {name}_cok")
    p("s_sleep 2")
    csp_loads(nc=True)
    p("s_waitcnt vmcnt(0)")
    p(f"s_branch {name}_cchk")
    p.label(name + "_cok")
    p("v_add_f32 v24, v104, v108")
    p("v_add_f32 v25, v106, v110")
    p("v_add_f32 v26, v112, v116")
    p("v_add_f32 v27, v114, v118")
    p("v_add_f32 v24, v24, v26")
    p("v_add_f32 v25, v25, v27")
    p("v_mov_b32 v29, v120")
    ffn_setup()
    lightB = name + "_lightB"
    CF = CFR
    tb = []
    for sw in ("v_permlane16_swap_b32", "v_permlane32_swap_b32"):
        tb += ["v_mov_b32 v26, v24", "v_mov_b32 v27, v25", f"{sw} v24, v26", f"{sw} v25, v27",
               "v_add_f32 v24, v24, v26", "v_add_f32 v25, v25, v27"]
    for i in range(2):
        tb += [f"v_cvt_pk_bf16_f32 v26, v{24+i}, v{24+i}", "v_and_b32 v26, 0xffff0000, v26",
               f"v_sub_f32 v26, v{24+i}, v26", f"v_cvt_pk_bf16_f32 v{16+2*i}, v{24+i}, v26"]
    tb += ["v_and_b32 v17, 0xffff, v29", "v_lshrrev_b32 v19, 16, v29",
           "v_and_b32 v28, 15, v1", "v_lshlrev_b32 v28, 4, v28", "s_lshl_b32 s59, s24, 8", f"s_add_u32 s59, s59, {M_CST}",
           "v_add_u32 v28, s59, v28",
           ["s_mov_b64 exec, 0xffff", "ds_write_b128 v28, v[16:19]", "s_mov_b64 exec, -1"]]
    pre, slots = ffn_slots(0, 48)
    emit(pre)
    emit(weave(slots[:24], tb, 2))
    p("s_waitcnt vmcnt(0) lgkmcnt(0)")
    p("s_barrier")
    p("s_cmp_lg_u32 s24, 1")
    p(";@carry")
    p(f"s_cbranch_scc1 {name}_nocnt")
    p("s_mov_b64 exec, 1")
    p("v_mov_b32 v123, 1")
    p("v_mov_b32 v122, 0")
    p.nocount()
    p(f"buffer_atomic_add v123, v122, s[{DBG}:{DBG+3}], 0 offen sc0 sc1")
    p("s_mov_b64 exec, -1")
    p(";@carry")
    p.label(name + "_nocnt")
    p("s_cmp_eq_u32 s30, 3")
    p(";@carry")
    p(f"s_cbranch_scc1 {lightB}")
    emit(weave(slots[24:], ffn_corr(0, CF), 1))
    emit(ffn_corr_mfma(48, CF))
    slots0 = slots
    stamp()
    pre, slots = ffn_slots(2, 64)
    emit(pre)
    fill = ffn_epi(0, 48, 16) + ffn_corr(2, CF)
    emit(weave(slots, fill, 5))
    emit(ffn_corr_mfma(64, CF))
    stamp()
    pre, slots = ffn_slots(3, 48)
    emit(pre)
    fill = ffn_epi(2, 64, 16) + ffn_corr(3, CF)
    emit(weave(slots, fill, 5))
    emit(ffn_corr_mfma(48, CF))
    stamp()
    emit(ffn_epi(3, 48, 16))
    nonce_bump(name + "_nb1")
    if stamps:
        stamp_out()
    p("s_endpgm")
    p(";@carry")
    p.label(lightB)
    stn["i"] = 3 if stamps == 1 else 11
    p("s_lshl_b32 s70, s27, 2")
    p("s_lshr_b32 s71, s28, 2")
    p("s_add_u32 s70, s70, s71")
    srd(p, 72, 64, 65, 512 * 1024)
    srd(p, 84, 66, 67, 512 * 1024)
    srd(p, W1, 68, 69, 1792 * 1024)
    p("v_lshrrev_b32 v13, 3, v1")
    p("v_bfe_u32 v14, v1, 4, 1")
    p("v_lshlrev_b32 v14, 2, v14")
    p("v_and_b32 v15, 7, v1")
    p("v_xor_b32 v14, v14, v15")
    p("v_lshlrev_b32 v14, 4, v14")
    p("v_lshl_add_u32 v112, v13, 10, v14")
    p("v_bfe_u32 v13, v1, 2, 2")
    p("v_lshl_add_u32 v14, v3, 2, v13")
    p("v_lshlrev_b32 v14, 7, v14")
    p("v_bfe_u32 v15, v1, 4, 1")
    p("v_lshlrev_b32 v15, 1, v15")
    p("v_bfe_u32 v12, v1, 1, 1")
    p("v_add_u32 v15, v15, v12")
    p("v_lshrrev_b32 v12, 1, v13")
    p("v_lshl_add_u32 v15, v12, 2, v15")
    p("v_lshl_add_u32 v14, v15, 4, v14")
    p("v_and_b32 v12, 1, v1")
    p("v_lshl_add_u32 v113, v12, 3, v14")
    p("s_lshl_b32 s71, s24, 13")
    p(f"s_add_u32 s71, s71, {U1A}")
    p("v_add_u32 v113, s71, v113")
    p("v_xor_b32 v114, 64, v113")
    p("v_lshlrev_b32 v115, 10, v2")
    p("v_lshl_add_u32 v115, v3, 3, v115")

    def slab_ids(i):
        p(f"s_add_u32 s64, s24, {4*i}")
        p("s_min_u32 s64, s64, 13")
        p("s_mul_i32 s65, s70, 14")
        p("s_add_u32 s64, s64, s65")
        p("s_lshr_b32 s65, s64, 3")
        p("s_and_b32 s66, s64, 7")

    def slab_dma(i):
        slab_ids(i)
        p("s_lshl_b32 s67, s65, 14")
        p("s_lshl_b32 s68, s66, 7")
        p("s_add_u32 s67, s67, s68")
        for q in range(2):
            p(f"s_add_u32 m0, s71, {i*2048 + q*1024}")
            p(f"s_add_u32 s62, s67, {q*8192}")
            p("buffer_load_dwordx4 v112, s[44:47], s62 offen lds")

    def slab_out(i):
        slab_ids(i)
        for dt in range(2):
            b = 88 + 4 * dt
            p(f"ds_read_b64_tr_b16 v[{b}:{b+1}], v{113+dt} offset:{i*2048}")
            p(f"ds_read_b64_tr_b16 v[{b+2}:{b+3}], v{113+dt} offset:{i*2048+1024}")
        p(f"s_mul_i32 s67, s66, {NSTEP}")
        p("s_add_u32 s67, s67, s65")
        p("s_add_u32 s67, s67, 64")
        p("s_lshl_b32 s67, s67, 11")
        p(f"s_add_u32 s67, s67, {WS_WC}")
        p(f"buffer_store_dwordx4 v[88:91], v9, s[{WS}:{WS+3}], s67 offen {stflag}")
        p(f"buffer_store_dwordx4 v[92:95], v9, s[{WS}:{WS+3}], s67 offen offset:1024 {stflag}")
    for i in range(4):
        slab_dma(i)
    p("v_lshrrev_b32 v12, 2, v1")
    p("v_lshlrev_b32 v12, 10, v12")
    p("v_lshrrev_b32 v13, 4, v1")
    p("v_xor_b32 v13, v13, v1")
    p("v_and_b32 v13, 3, v13")
    p("v_lshl_add_u32 v115, v13, 4, v12")
    p("s_lshr_b32 s64, s70, 3")
    p("s_and_b32 s65, s70, 7")
    p("s_and_b32 s66, s24, 1")
    p("s_lshr_b32 s67, s24, 1")
    p("s_lshl_b32 s68, s64, 6")
    p("s_lshl_b32 s69, s66, 5")
    p("s_add_u32 s68, s68, s69")
    p("s_lshl_b32 s68, s68, 10")
    p("s_lshl_b32 s69, s65, 7")
    p("s_add_u32 s68, s68, s69")
    p("s_lshl_b32 s69, s67, 6")
    p("s_add_u32 s68, s68, s69")
    p("s_lshl_b32 s88, s24, 12")
    p(f"s_add_u32 s88, s88, {U1A + 32768}")
    for mat, sr in ((0, 72), (1, 84)):
        for q in range(2):
            p(f"s_add_u32 m0, s88, {mat*2048 + q*1024}")
            p(f"s_add_u32 s62, s68, {q*16384}")
            p(f"buffer_load_dwordx4 v115, s[{sr}:{sr+3}], s62 offen lds")
    p(f"s_mul_i32 s10, s64, {NSTEP}")
    p("s_lshl_b32 s11, s65, 3")
    p("s_add_u32 s10, s10, s11")
    p("s_lshl_b32 s11, s67, 2")
    p("s_add_u32 s10, s10, s11")
    p("s_lshl_b32 s10, s10, 1")
    p("s_add_u32 s10, s10, s66")
    p("s_lshl_b32 s10, s10, 10")
    p(f"s_add_u32 s10, s10, {WS_WC}")
    p("v_bfe_u32 v12, v2, 2, 2")
    p("v_lshlrev_b32 v12, 4, v12")
    p("v_lshl_add_u32 v12, v2, 6, v12")
    p("v_lshl_add_u32 v12, v3, 3, v12")
    p("v_add_u32 v116, s88, v12")
    p.mark("wcl")
    emit(weave(slots0[24:], ffn_corr(0, CF), 1))
    emit(ffn_corr_mfma(48, CF))
    emit(ffn_epi(0, 48, 16))
    stamp()
    p.waitvm("wcl", lgkm=False)
    for i in range(4):
        slab_out(i)
    p("s_mov_b32 s76, 0x05040100")
    p("s_mov_b32 s77, 0x07060302")
    for i in range(4):
        b = 64 + 4 * i
        p(f"v_xor_b32 v117, {16*i}, v116")
        p(f"ds_read_b64 v[{b}:{b+1}], v117")
        p(f"ds_read_b64 v[{b+2}:{b+3}], v117 offset:2048")
    for i in range(4):
        b = 64 + 4 * i
        p(f"v_perm_b32 v{16+4*i}, v{b+2}, v{b}, s76")
        p(f"v_perm_b32 v{17+4*i}, v{b+2}, v{b}, s77")
        p(f"v_perm_b32 v{18+4*i}, v{b+3}, v{b+1}, s76")
        p(f"v_perm_b32 v{19+4*i}, v{b+3}, v{b+1}, s77")
        p(f"s_add_u32 s11, s10, {i*2048}")
        p(f"buffer_store_dwordx4 v[{16+4*i}:{19+4*i}], v9, s[{WS}:{WS+3}], s11 offen {stflag}")
    nonce_bump(name + "_nb2")
    if stamps:
        stamp_out()
    p.label(end)
    p("s_endpgm")
    code = kernel_header(name) + finalize(p)
    desc = kernel_desc(name, 256, 102, 128)
    return code, desc, 163840
```

```python
from asmlib import *
from layout import *
from gen_k2 import KA, srd, add64, kernel_header, kernel_desc


def gen_k2(name="k2_kernel", NLPG=2, stamps=False, xcdmap=0, rot=0, cdma=True, force0=False):
    p = Prog()
    STEPS = 44
    CH = 2
    NCH = STEPS // CH
    RING = 5
    GB = RING * CH * 4096
    NW = 4 + 4 * NLPG
    end = name + "_end"
    p("s_cmp_ge_u32 s2, 256")
    p(f"s_cbranch_scc1 {end}")
    if stamps:
        p("s_memtime s[60:61]")
        p("s_memrealtime s[62:63]")
    p(f"s_load_dwordx2 s[12:13], s[0:1], {KA['ws']}")
    p(f"s_load_dwordx2 s[4:5], s[0:1], {KA['x']}")
    p(f"s_load_dwordx2 s[6:7], s[0:1], {KA['dsk']}")
    p(f"s_load_dwordx4 s[8:11], s[0:1], {KA['b2']}")
    p("v_lshrrev_b32 v1, 6, v0")
    p("v_and_b32 v2, 63, v0")
    p("v_readfirstlane_b32 s14, v1")
    p("s_and_b32 s15, s2, 7")
    p("s_lshr_b32 s16, s2, 3")
    if xcdmap == 0:
        p("s_lshr_b32 s17, s16, 3")
        p("s_lshl_b32 s15, s15, 2")
        p("s_add_u32 s17, s17, s15")
        p("s_and_b32 s18, s16, 7")
    else:
        p("s_lshr_b32 s17, s16, 2")
        p("s_lshr_b32 s18, s15, 1")
        p("s_lshl_b32 s18, s18, 3")
        p("s_add_u32 s17, s17, s18")
        p("s_and_b32 s18, s16, 3")
        p("s_and_b32 s15, s15, 1")
        p("s_lshl_b32 s15, s15, 2")
        p("s_add_u32 s18, s18, s15")
    if force0:
        p("s_mov_b32 s17, 0"); p("s_mov_b32 s18, 0")
    p("v_lshlrev_b32 v3, 4, v2")
    p("s_cmp_lt_u32 s14, 4")
    p(";@carry")
    p(f"s_cbranch_scc1 {name}_C")
    p("s_sub_u32 s19, s14, 4")
    p("s_and_b32 s20, s19, 3")
    p("s_lshr_b32 s21, s19, 2")
    assert NLPG == 2
    p(f"s_mul_i32 s22, s17, {NSTEP*2048}")
    p(f"s_add_u32 s22, s22, {WS_H}")
    p(f"s_mul_i32 s23, s18, {NSTEP*2048}")
    p(f"s_add_u32 s23, s23, {WS_WC}")
    p("s_cmp_eq_u32 s21, 0")
    p("s_cselect_b32 s22, s22, s23")
    p(f"s_mul_i32 s53, s20, {STEPS*2048}")
    p(f"s_mul_i32 s54, s20, {GB}")
    p("s_lshl_b32 s55, s21, 11")
    p("s_add_u32 s54, s54, s55")
    p("s_waitcnt lgkmcnt(0)")
    add64(p, 48, 49, 12, 13, "s22")
    srd(p, 24, 48, 49, NSTEP * 2048)

    if rot:
        p("s_lshl_b32 s57, s17, 1")
        p("s_add_u32 s57, s57, s18")
        p("s_and_b32 s57, s57, 7")
        p(f"s_mul_i32 s57, s57, {rot*CH*2048}")
        p(f"s_cmp_ge_u32 s57, {NCH*CH*2048}")
        p(f"s_cselect_b32 s58, {NCH*CH*2048}, 0")
        p("s_sub_u32 s57, s57, s58")
    else:
        p("s_mov_b32 s57, 0")

    def dmas(c):
        p("s_add_u32 s58, s53, s57")
        for st in range(CH):
            for i in range(2):
                if cdma and st == 1 and i == 1:
                    continue
                slot = (c % RING) * CH * 4096 + st * 4096 + i * 1024
                p(f"s_add_u32 m0, s54, {slot}")
                p(f"s_add_u32 s56, s58, {st*2048 + i*1024}")
                p("buffer_load_dwordx4 v3, s[24:27], s56 offen lds")
        p(f"s_add_u32 s57, s57, {CH*2048}")
        p(f"s_cmp_eq_u32 s57, {NCH*CH*2048}")
        p("s_cselect_b32 s57, 0, s57")
        p.mark(f"c{c}")
    for c in range(RING - 1):
        dmas(c)
    for c in range(NCH):
        p.waitvm(f"c{c}", lgkm=False)
        p("s_barrier")
        if c + RING - 1 < NCH:
            dmas(c + RING - 1)
    p("s_barrier")
    p("s_endpgm")
    p(";@carry")
    p.label(name + "_C")
    RPW = 16
    p(f"s_mul_i32 s54, s14, {GB}")
    p("v_add_u32 v4, s54, v3")
    p("s_waitcnt lgkmcnt(0)")
    if cdma:
        p(f"s_mul_i32 s22, s17, {NSTEP*2048}")
        p(f"s_add_u32 s22, s22, {WS_H}")
        add64(p, 48, 49, 12, 13, "s22")
        srd(p, 20, 48, 49, NSTEP * 2048)
        p(f"s_mul_i32 s22, s18, {NSTEP*2048}")
        p(f"s_add_u32 s22, s22, {WS_WC}")
        add64(p, 48, 49, 12, 13, "s22")
        srd(p, 24, 48, 49, NSTEP * 2048)
        p(f"s_mul_i32 s57, s14, {STEPS*2048}")
        p(f"s_mul_i32 s58, s14, {GB}")

    def cdmas(c):
        o = []
        slot = (c % RING) * CH * 4096 + 4096
        o.append([f"s_add_u32 m0, s58, {slot + 1024}", f"s_add_u32 s59, s57, {(c*CH+1)*2048 + 1024}",
                  "buffer_load_dwordx4 v3, s[20:23], s59 offen lds"])
        o.append([f"s_add_u32 m0, s58, {slot + 3072}", f"s_add_u32 s59, s57, {(c*CH+1)*2048 + 1024}",
                  "buffer_load_dwordx4 v3, s[24:27], s59 offen lds"])
        return o
    if cdma:
        for c in range(RING - 1):
            for d in cdmas(c):
                for t in d: p(t)
            p.mark(f"k{c}")
    p("s_lshl_b32 s19, s17, 16")
    p("s_lshl_b32 s50, s18, 7")
    p("s_add_u32 s19, s19, s50")
    add64(p, 48, 49, 4, 5, "s19")
    srd(p, 28, 48, 49, 65536)
    p("s_sub_u32 s30, 65536, s50")
    p("s_lshl_b32 s19, s17, 9")
    p(f"s_add_u32 s19, s19, {WS_STATS}")
    add64(p, 48, 49, 12, 13, "s19")
    srd(p, 32, 48, 49, 512)
    add64(p, 48, 49, 6, 7, "s50")
    srd(p, 36, 48, 49, 128)
    add64(p, 48, 49, 8, 9, "s50")
    srd(p, 40, 48, 49, 128)
    p("s_lshl_b32 s19, s17, 17")
    p("s_lshl_b32 s51, s18, 8")
    p("s_add_u32 s19, s19, s51")
    add64(p, 48, 49, 10, 11, "s19")
    srd(p, 44, 48, 49, 131072)
    p("s_sub_u32 s46, 131072, s51")
    p("v_lshrrev_b32 v5, 4, v2")
    p("v_and_b32 v6, 15, v2")
    p("s_lshl_b32 s52, s14, 4")
    p("v_add_u32 v7, s52, v5")
    p("v_lshlrev_b32 v8, 10, v7")
    p("v_lshl_add_u32 v8, v6, 3, v8")
    p("v_lshlrev_b32 v9, 3, v7")
    p("v_lshlrev_b32 v10, 3, v6")
    p("v_lshlrev_b32 v11, 11, v7")
    p("v_lshl_add_u32 v11, v6, 4, v11")
    for q in range(4):
        p(f"s_mov_b32 s54, {q*4096}")
        p(f"buffer_load_dwordx2 v[{40+2*q}:{41+2*q}], v8, s[28:31], s54 offen")
        p(f"buffer_load_dwordx2 v[{48+2*q}:{49+2*q}], v9, s[32:35], 0 offen offset:{q*32}")
    p("buffer_load_dwordx2 v[56:57], v10, s[36:39], 0 offen")
    p("buffer_load_dwordx2 v[58:59], v10, s[40:43], 0 offen")
    p("v_and_b32 v74, 31, v2")
    p("v_lshrrev_b32 v75, 5, v2")
    p("v_bfe_u32 v76, v74, 2, 1")
    p("v_lshlrev_b32 v77, 4, v76")
    p("v_lshrrev_b32 v78, 3, v74")
    p("v_lshl_add_u32 v77, v78, 2, v77")
    p("v_and_b32 v78, 3, v74")
    p("v_add_u32 v77, v77, v78")
    p("v_lshl_add_u32 v78, v76, 2, v78")
    p(f"s_mul_i32 s55, s14, {GB}")
    p("v_lshlrev_b32 v77, 8, v77")
    p("v_add_u32 v77, s55, v77")
    for a in range(4):
        p(f"v_add_u32 v79, {2*a}, v75")
        p("v_xor_b32 v79, v79, v78")
        p(f"v_lshl_add_u32 v{28+a}, v79, 4, v77")
    p("s_and_b32 s56, s14, 1")
    p("s_lshl_b32 s56, s56, 2")
    p("v_or_b32 v79, s56, v5")
    p("v_xor_b32 v79, v79, v6")
    p("v_lshlrev_b32 v32, 8, v7")
    p("v_lshl_add_u32 v32, v79, 4, v32")
    p(f"v_add_u32 v33, {2*GB}, v32")
    DK = [60, 61, 62, 63]
    B2 = [64, 65, 66, 67]
    for t_ in ["v_lshlrev_b32 v60, 16, v56", "v_and_b32 v61, 0xffff0000, v56", "v_lshlrev_b32 v62, 16, v57", "v_and_b32 v63, 0xffff0000, v57",
               "v_lshlrev_b32 v64, 16, v58", "v_and_b32 v65, 0xffff0000, v58", "v_lshlrev_b32 v66, 16, v59", "v_and_b32 v67, 0xffff0000, v59"]:
        p(t_)
    for q in range(4):
        xr = [12 + 4 * q + i for i in range(4)]
        m_, rs = 48 + 2 * q, 49 + 2 * q
        t = [68, 69, 70, 71]
        for t_ in [f"v_lshlrev_b32 v{xr[0]}, 16, v{40+2*q}", f"v_and_b32 v{xr[1]}, 0xffff0000, v{40+2*q}",
                   f"v_lshlrev_b32 v{xr[2]}, 16, v{41+2*q}", f"v_and_b32 v{xr[3]}, 0xffff0000, v{41+2*q}"]:
            p(t_)
        for i in range(4): p(f"v_sub_f32 v{t[i]}, v{xr[i]}, v{m_}")
        rnd = [f"v_cvt_pk_bf16_f32 v72, v{t[0]}, v{t[1]}", f"v_cvt_pk_bf16_f32 v73, v{t[2]}, v{t[3]}",
               f"v_lshlrev_b32 v{t[0]}, 16, v72", f"v_and_b32 v{t[1]}, 0xffff0000, v72",
               f"v_lshlrev_b32 v{t[2]}, 16, v73", f"v_and_b32 v{t[3]}, 0xffff0000, v73"]
        for t_ in rnd: p(t_)
        for i in range(4): p(f"v_mul_f32 v{t[i]}, v{t[i]}, v{rs}")
        for t_ in rnd: p(t_)
        for i in range(4): p(f"v_mul_f32 v{t[i]}, v{t[i]}, v{DK[i]}")
        for t_ in rnd: p(t_)
        for i in range(4):
            p(f"v_add_f32 v{xr[i]}, v{xr[i]}, v{t[i]}")
            p(f"v_add_f32 v{xr[i]}, v{xr[i]}, v{B2[i]}")
    bc = []
    FB = 40

    def reads(c):
        o = []
        for st in range(CH):
            b = FB + ((c & 1) * CH + st) * 16
            off = (c % RING) * CH * 4096 + st * 4096
            for i in range(4):
                o.append(f"ds_read_b128 v[{b+4*i}:{b+4*i+3}], v4 offset:{off + i*1024}")
        return o

    def mfmas(c):
        o = []
        for st in range(CH):
            b = FB + ((c & 1) * CH + st) * 16
            for dt in range(2):
                for rt in range(2):
                    acc = (dt * 2 + rt) * 16
                    cc = "0" if (c == 0 and st == 0) else f"a[{acc}:{acc+15}]"
                    o.append(f"v_mfma_f32_32x32x16_bf16 a[{acc}:{acc+15}], v[{b+8+4*dt}:{b+8+4*dt+3}], v[{b+4*rt}:{b+4*rt+3}], {cc}")
        return o
    for c in range(NCH):
        if cdma:
            p.waitvm(f"k{c}")
        else:
            p("s_waitcnt lgkmcnt(0)")
        p("s_barrier")
        if stamps and c == 0:
            p("s_memtime s[64:65]")
        rd = reads(c)
        mf = mfmas(c - 1) if c >= 1 else []
        seq = []
        for i in range(4):
            if i < len(mf): seq.append(mf[i])
            seq += rd[2*i:2*i+2]
        dm = cdmas(c + RING - 1) if (cdma and c + RING - 1 < NCH) else []
        for i in range(4, 8):
            if i < len(mf): seq.append(mf[i])
            if i in (4, 6) and dm:
                seq += dm.pop(0)
        for t in seq: p(t)
        if cdma and c + RING - 1 < NCH:
            p.mark(f"k{c+RING-1}")
    p("s_waitcnt lgkmcnt(0)")
    for t in mfmas(NCH - 1): p(t)
    for t in bc: p(t)
    if stamps:
        p("s_memtime s[66:67]")
    for dt in range(2):
        for rt in range(2):
            acc = (dt * 2 + rt) * 16
            for a in range(4):
                p(f"ds_write_b128 v{28+a}, a[{acc+4*a}:{acc+4*a+3}] offset:{rt*8192 + dt*128}")
    p("s_waitcnt lgkmcnt(0)")
    p("s_barrier")
    for q in range(4):
        for w in range(4):
            b = 40 + (q * 4 + w) * 4
            p(f"ds_read_b128 v[{b}:{b+3}], v{32 if w < 2 else 33} offset:{(w%2)*GB + q*1024}")
    for q in range(4):
        for w in range(4):
            b = 40 + (q * 4 + w) * 4
            for i in range(4):
                p(f"v_add_f32 v{12+4*q+i}, v{12+4*q+i}, v{b+i}")
        p(f"s_mov_b32 s54, {q*8192}")
        p(f"buffer_store_dwordx4 v[{12+4*q}:{15+4*q}], v11, s[44:47], s54 offen")
    if stamps:
        p("s_waitcnt vmcnt(0)")
        p("s_memtime s[68:69]")
        p("s_memrealtime s[70:71]")
        p("s_waitcnt lgkmcnt(0)")
        p("s_lshl_b32 s19, s2, 3")
        p("s_add_u32 s19, s19, s14")
        p("s_lshl_b32 s19, s19, 6")
        p("s_add_u32 s19, s19, 0x5000000")
        add64(p, 48, 49, 12, 13, "s19")
        srd(p, 72, 48, 49, 64)
        for i, r in enumerate([60, 64, 66, 68, 62, 70, 64]):
            p(f"v_mov_b32 v{64+i}, s{r}")
        p("v_mov_b32 v72, 0")
        p("s_mov_b64 exec, 1")
        p("buffer_store_dwordx4 v[64:67], v72, s[72:75], 0 offen")
        p("buffer_store_dwordx4 v[68:71], v72, s[72:75], 0 offen offset:16")
    p.label(end)
    p("s_endpgm")
    code = kernel_header(name) + finalize(p)
    desc = kernel_desc(name, 168, 80, 104)
    return code, desc, 4 * GB, NW
```

```python
import sys
sys.path.insert(0, "dev")
from asmlib import *
from layout import *

def compose(kernels, header_comment=""):
    s = "; parallel_sum(ssm_conv_s5, dense_gelu) -- generated by own python generator\n"
    for (name, grid, block, code, desc, lds) in kernels:
        s += f"; @launch kernel={name} grid=({grid},1,1) block=({block},1,1) lds={lds}\n"
    s += '.amdgcn_target "amdgcn-amd-amdhsa--gfx950"\n.text\n'
    done = set()
    for (name, grid, block, code, desc, lds) in kernels:
        if name in done: continue
        done.add(name)
        s += code + "\n"
    s += '.section .rodata,"a"\n.p2align 6\n'
    done = set()
    for (name, grid, block, code, desc, lds) in kernels:
        if name in done: continue
        done.add(name)
        s += ".p2align 6\n" + desc
    return s

if __name__ == "__main__":
    which = sys.argv[1]
    outp = sys.argv[2]
    if which == "k2":
        from gen_k2 import gen_k2
        depth = int(sys.argv[3]) if len(sys.argv) > 3 else 8
        opts = sys.argv[4:]
        code, desc, lds = gen_k2(DEPTH=depth, force_rg0=("rg0" in opts), force_cg0=("cg0" in opts), stamps=("stamps" in opts), nomfma=("nomfma" in opts))
        open(outp, "w").write(compose([("k2_kernel", 256, 256, code, desc, lds)]))

    if which == "k0":
        from gen_k0 import gen_k0
        code, desc, lds = gen_k0()
        open(outp, "w").write(compose([("k0_kernel", 256, 256, code, desc, lds)]))
    if which == "all":
        from gen_k0 import gen_k0
        from gen_k1 import gen_k1
        from gen_k2 import gen_k2
        opts = sys.argv[3:]
        ks = []
        code, desc, lds = gen_k0(); ks.append(("k0_kernel", 256, 256, code, desc, lds))
        code, desc, lds = gen_k1(stamps=("stamps" in opts)); ks.append(("k1_kernel", 256, 512, code, desc, lds))
        code, desc, lds = gen_k2(); ks.append(("k2_kernel", 256, 256, code, desc, lds))
        open(outp, "w").write(compose(ks))

    if which == "v2":
        from gen_k1b import gen_k1
        from gen_k2 import gen_k2
        opts = sys.argv[3:]
        ks = []
        code, desc, lds = gen_k1(stamps=("stamps" in opts)); ks.append(("k1_kernel", 256, 512, code, desc, lds))
        code, desc, lds = gen_k2(); ks.append(("k2_kernel", 256, 256, code, desc, lds))
        open(outp, "w").write(compose(ks))

    if which == "v3":
        from gen_k1c import gen_k1
        from gen_k2 import gen_k2
        opts = sys.argv[3:]
        ks = []
        kw = {}
        for o in opts:
            if o.startswith("xcd="): kw["xcdmap"] = int(o[4:])
            if o.startswith("at="): kw["a_tiles"] = tuple(int(c) for c in o[3:])
            if o.startswith("bt="): kw["b_tiles"] = tuple(int(c) for c in o[3:])
            if o == "nopf": kw["prefetch"] = False
            if o == "norot": kw["rot"] = False
        code, desc, lds = gen_k1(stamps=("stamps" in opts), **kw); ks.append(("k1_kernel", 256, 512, code, desc, lds))
        code, desc, lds = gen_k2(); ks.append(("k2_kernel", 256, 256, code, desc, lds))
        open(outp, "w").write(compose(ks))

    if which == "v4":
        from gen_k1c import gen_k1
        from gen_k2b import gen_k2
        opts = sys.argv[3:]
        ks = []
        kw = {}; kw2 = {}
        for o in opts:
            if o.startswith("xcd="): kw["xcdmap"] = int(o[4:])
            if o.startswith("at="): kw["a_tiles"] = tuple(int(c) for c in o[3:])
            if o.startswith("bt="): kw["b_tiles"] = tuple(int(c) for c in o[3:])
            if o.startswith("nw="): kw2["NW"] = int(o[3:])
            if o.startswith("depth="): kw2["DEPTH"] = int(o[6:])
        nw = kw2.get("NW", 8)
        code, desc, lds = gen_k1(stamps=("stamps" in opts), **kw); ks.append(("k1_kernel", 256, 512, code, desc, lds))
        code, desc, lds = gen_k2(stamps=("stamps" in opts), **kw2); ks.append(("k2_kernel", 256, 64*nw, code, desc, lds))
        open(outp, "w").write(compose(ks))

    if which == "k2b":
        from gen_k2b import gen_k2
        opts = sys.argv[3:]
        kw2 = {}
        for o in opts:
            if o.startswith("nw="): kw2["NW"] = int(o[3:])
            if o.startswith("depth="): kw2["DEPTH"] = int(o[6:])
            if o == "loop": kw2["loop"] = True
            if o == "f0": kw2["force0"] = True
            if o.startswith("xcd="): kw2["xcdmap"] = int(o[4:])
        nw = kw2.get("NW", 8)
        code, desc, lds = gen_k2(stamps=True, **kw2)
        open(outp, "w").write(compose([("k2_kernel", 256, 64*nw, code, desc, lds)]))

    if which == "v5":
        from gen_k1d import gen_k1
        from gen_k2b import gen_k2
        opts = sys.argv[3:]
        ks = []
        kw = {}; kw2 = {}
        st = 0
        for o in opts:
            if o.startswith("nw="): kw2["NW"] = int(o[3:])
            if o.startswith("depth="): kw2["DEPTH"] = int(o[6:])
            if o.startswith("stamps"): st = int(o[6:] or 1)
            if o.startswith("xcd="): kw["xcdmap"] = int(o[4:]); kw2["xcdmap"] = int(o[4:])
            if o == "nopf": kw["prefetch"] = False
        nw = kw2.get("NW", 8)
        code, desc, lds = gen_k1(stamps=st, **kw); ks.append(("k1_kernel", 256, 512, code, desc, lds))
        code, desc, lds = gen_k2(stamps=(st > 0), **kw2); ks.append(("k2_kernel", 256, 64*nw, code, desc, lds))
        open(outp, "w").write(compose(ks))

    if which == "v5pf":
        from gen_k1d import gen_k1
        from gen_k2b import gen_k2
        from gen_pf import gen_pf
        ks = []
        code, desc, lds = gen_k1(stamps=1, prefetch=False); ks.append(("k1_kernel", 256, 512, code, desc, lds))
        if "nopf" not in sys.argv:
            code, desc, lds = gen_pf(); ks.append(("pf_kernel", 256, 256, code, desc, lds))
        code, desc, lds = gen_k2(stamps=True, xcdmap=0); ks.append(("k2_kernel", 256, 512, code, desc, lds))
        open(outp, "w").write(compose(ks))

    if which == "k2h":
        from gen_k2h import gen_k2
        kw = {}
        for o in sys.argv[3:]:
            if o.startswith("xcd="): kw["xcdmap"] = int(o[4:])
            if o == "f0": kw["force0"] = True
            if o == "nocdma": kw["cdma"] = False
        code, desc, lds, nw = gen_k2(stamps=True, **kw)
        open(outp, "w").write(compose([("k2_kernel", 256, 64*nw, code, desc, lds)]))
    if which == "v6":
        import importlib
        opts = sys.argv[3:]
        k1mod = "gen_k1d"
        kw = {}; kw2 = {}
        st = 0
        for o in opts:
            if o.startswith("stamps"): st = int(o[6:] or 1)
            if o.startswith("xcd1="): kw["xcdmap"] = int(o[5:])
            if o.startswith("xcd2="): kw2["xcdmap"] = int(o[5:])
            if o.startswith("rot="): kw2["rot"] = int(o[4:])
            if o == "pf": kw["prefetch"] = True
            if o.startswith("k1="): k1mod = o[3:]
            if o == "wt": kw["stflag"] = "sc0 sc1"
            if o == "wt1": kw["stflag"] = "sc1"
        kw.setdefault("prefetch", False)
        gen_k1 = importlib.import_module(k1mod).gen_k1
        from gen_k2h import gen_k2
        ks = []
        code, desc, lds = gen_k1(stamps=st, **kw); ks.append(("k1_kernel", 256, 512, code, desc, lds))
        code, desc, lds, nw = gen_k2(stamps=(st > 0), **kw2); ks.append(("k2_kernel", 256, 64*nw, code, desc, lds))
        open(outp, "w").write(compose(ks))

    if which == "v9pf":
        from gen_k1h import gen_k1
        from gen_k2h import gen_k2
        from gen_pf import gen_pf
        ks = []
        code, desc, lds = gen_k1(stamps=1, prefetch=False, stflag="sc0 sc1"); ks.append(("k1_kernel", 256, 512, code, desc, lds))
        if "nopf" not in sys.argv:
            code, desc, lds = gen_pf(); ks.append(("pf_kernel", 256, 256, code, desc, lds))
        code, desc, lds, nw = gen_k2(stamps=True, xcdmap=0); ks.append(("k2_kernel", 256, 64*nw, code, desc, lds))
        open(outp, "w").write(compose(ks))

    if which == "f1":
        import importlib
        opts = sys.argv[3:]
        mod = "gen_f1"
        kw = {"prefetch": False, "stflag": "sc0 sc1"}
        st = 0
        for o in opts:
            if o.startswith("stamps"): st = int(o[6:] or 1)
            if o.startswith("mod="): mod = o[4:]
            if o == "wt1": kw["stflag"] = "sc1"
        gen_k1 = importlib.import_module(mod).gen_k1
        code, desc, lds = gen_k1(name="fused_kernel", stamps=st, **kw)
        open(outp, "w").write(compose([("fused_kernel", 256, 512, code, desc, lds)]))
```

```python
import sys
sys.path.insert(0, "dev")
from asmlib import *
from layout import *

def compose(kernels, header_comment=""):
    s = "; parallel_sum(ssm_conv_s5, dense_gelu) -- generated by own python generator\n"
    for (name, grid, block, code, desc, lds) in kernels:
        s += f"; @launch kernel={name} grid=({grid},1,1) block=({block},1,1) lds={lds}\n"
    s += '.amdgcn_target "amdgcn-amd-amdhsa--gfx950"\n.text\n'
    done = set()
    for (name, grid, block, code, desc, lds) in kernels:
        if name in done: continue
        done.add(name)
        s += code + "\n"
    s += '.section .rodata,"a"\n.p2align 6\n'
    done = set()
    for (name, grid, block, code, desc, lds) in kernels:
        if name in done: continue
        done.add(name)
        s += ".p2align 6\n" + desc
    return s

if __name__ == "__main__":
    which = sys.argv[1]
    outp = sys.argv[2]
    if which == "k2":
        from gen_k2 import gen_k2
        depth = int(sys.argv[3]) if len(sys.argv) > 3 else 8
        opts = sys.argv[4:]
        code, desc, lds = gen_k2(DEPTH=depth, force_rg0=("rg0" in opts), force_cg0=("cg0" in opts), stamps=("stamps" in opts), nomfma=("nomfma" in opts))
        open(outp, "w").write(compose([("k2_kernel", 256, 256, code, desc, lds)]))

    if which == "k0":
        from gen_k0 import gen_k0
        code, desc, lds = gen_k0()
        open(outp, "w").write(compose([("k0_kernel", 256, 256, code, desc, lds)]))
    if which == "all":
        from gen_k0 import gen_k0
        from gen_k1 import gen_k1
        from gen_k2 import gen_k2
        opts = sys.argv[3:]
        ks = []
        code, desc, lds = gen_k0(); ks.append(("k0_kernel", 256, 256, code, desc, lds))
        code, desc, lds = gen_k1(stamps=("stamps" in opts)); ks.append(("k1_kernel", 256, 512, code, desc, lds))
        code, desc, lds = gen_k2(); ks.append(("k2_kernel", 256, 256, code, desc, lds))
        open(outp, "w").write(compose(ks))

    if which == "v2":
        from gen_k1b import gen_k1
        from gen_k2 import gen_k2
        opts = sys.argv[3:]
        ks = []
        code, desc, lds = gen_k1(stamps=("stamps" in opts)); ks.append(("k1_kernel", 256, 512, code, desc, lds))
        code, desc, lds = gen_k2(); ks.append(("k2_kernel", 256, 256, code, desc, lds))
        open(outp, "w").write(compose(ks))

    if which == "v3":
        from gen_k1c import gen_k1
        from gen_k2 import gen_k2
        opts = sys.argv[3:]
        ks = []
        kw = {}
        for o in opts:
            if o.startswith("xcd="): kw["xcdmap"] = int(o[4:])
            if o.startswith("at="): kw["a_tiles"] = tuple(int(c) for c in o[3:])
            if o.startswith("bt="): kw["b_tiles"] = tuple(int(c) for c in o[3:])
            if o == "nopf": kw["prefetch"] = False
            if o == "norot": kw["rot"] = False
        code, desc, lds = gen_k1(stamps=("stamps" in opts), **kw); ks.append(("k1_kernel", 256, 512, code, desc, lds))
        code, desc, lds = gen_k2(); ks.append(("k2_kernel", 256, 256, code, desc, lds))
        open(outp, "w").write(compose(ks))

    if which == "v4":
        from gen_k1c import gen_k1
        from gen_k2b import gen_k2
        opts = sys.argv[3:]
        ks = []
        kw = {}; kw2 = {}
        for o in opts:
            if o.startswith("xcd="): kw["xcdmap"] = int(o[4:])
            if o.startswith("at="): kw["a_tiles"] = tuple(int(c) for c in o[3:])
            if o.startswith("bt="): kw["b_tiles"] = tuple(int(c) for c in o[3:])
            if o.startswith("nw="): kw2["NW"] = int(o[3:])
            if o.startswith("depth="): kw2["DEPTH"] = int(o[6:])
        nw = kw2.get("NW", 8)
        code, desc, lds = gen_k1(stamps=("stamps" in opts), **kw); ks.append(("k1_kernel", 256, 512, code, desc, lds))
        code, desc, lds = gen_k2(stamps=("stamps" in opts), **kw2); ks.append(("k2_kernel", 256, 64*nw, code, desc, lds))
        open(outp, "w").write(compose(ks))

    if which == "k2b":
        from gen_k2b import gen_k2
        opts = sys.argv[3:]
        kw2 = {}
        for o in opts:
            if o.startswith("nw="): kw2["NW"] = int(o[3:])
            if o.startswith("depth="): kw2["DEPTH"] = int(o[6:])
            if o == "loop": kw2["loop"] = True
            if o == "f0": kw2["force0"] = True
            if o.startswith("xcd="): kw2["xcdmap"] = int(o[4:])
        nw = kw2.get("NW", 8)
        code, desc, lds = gen_k2(stamps=True, **kw2)
        open(outp, "w").write(compose([("k2_kernel", 256, 64*nw, code, desc, lds)]))

    if which == "v5":
        from gen_k1d import gen_k1
        from gen_k2b import gen_k2
        opts = sys.argv[3:]
        ks = []
        kw = {}; kw2 = {}
        st = 0
        for o in opts:
            if o.startswith("nw="): kw2["NW"] = int(o[3:])
            if o.startswith("depth="): kw2["DEPTH"] = int(o[6:])
            if o.startswith("stamps"): st = int(o[6:] or 1)
            if o.startswith("xcd="): kw["xcdmap"] = int(o[4:]); kw2["xcdmap"] = int(o[4:])
            if o == "nopf": kw["prefetch"] = False
        nw = kw2.get("NW", 8)
        code, desc, lds = gen_k1(stamps=st, **kw); ks.append(("k1_kernel", 256, 512, code, desc, lds))
        code, desc, lds = gen_k2(stamps=(st > 0), **kw2); ks.append(("k2_kernel", 256, 64*nw, code, desc, lds))
        open(outp, "w").write(compose(ks))

    if which == "v5pf":
        from gen_k1d import gen_k1
        from gen_k2b import gen_k2
        from gen_pf import gen_pf
        ks = []
        code, desc, lds = gen_k1(stamps=1, prefetch=False); ks.append(("k1_kernel", 256, 512, code, desc, lds))
        if "nopf" not in sys.argv:
            code, desc, lds = gen_pf(); ks.append(("pf_kernel", 256, 256, code, desc, lds))
        code, desc, lds = gen_k2(stamps=True, xcdmap=0); ks.append(("k2_kernel", 256, 512, code, desc, lds))
        open(outp, "w").write(compose(ks))

    if which == "k2h":
        from gen_k2h import gen_k2
        kw = {}
        for o in sys.argv[3:]:
            if o.startswith("xcd="): kw["xcdmap"] = int(o[4:])
            if o == "f0": kw["force0"] = True
            if o == "nocdma": kw["cdma"] = False
        code, desc, lds, nw = gen_k2(stamps=True, **kw)
        open(outp, "w").write(compose([("k2_kernel", 256, 64*nw, code, desc, lds)]))
    if which == "v6":
        import importlib
        opts = sys.argv[3:]
        k1mod = "gen_k1d"
        kw = {}; kw2 = {}
        st = 0
        for o in opts:
            if o.startswith("stamps"): st = int(o[6:] or 1)
            if o.startswith("xcd1="): kw["xcdmap"] = int(o[5:])
            if o.startswith("xcd2="): kw2["xcdmap"] = int(o[5:])
            if o.startswith("rot="): kw2["rot"] = int(o[4:])
            if o == "pf": kw["prefetch"] = True
            if o.startswith("k1="): k1mod = o[3:]
            if o == "wt": kw["stflag"] = "sc0 sc1"
            if o == "wt1": kw["stflag"] = "sc1"
        kw.setdefault("prefetch", False)
        gen_k1 = importlib.import_module(k1mod).gen_k1
        from gen_k2h import gen_k2
        ks = []
        code, desc, lds = gen_k1(stamps=st, **kw); ks.append(("k1_kernel", 256, 512, code, desc, lds))
        code, desc, lds, nw = gen_k2(stamps=(st > 0), **kw2); ks.append(("k2_kernel", 256, 64*nw, code, desc, lds))
        open(outp, "w").write(compose(ks))

    if which == "v9pf":
        from gen_k1h import gen_k1
        from gen_k2h import gen_k2
        from gen_pf import gen_pf
        ks = []
        code, desc, lds = gen_k1(stamps=1, prefetch=False, stflag="sc0 sc1"); ks.append(("k1_kernel", 256, 512, code, desc, lds))
        if "nopf" not in sys.argv:
            code, desc, lds = gen_pf(); ks.append(("pf_kernel", 256, 256, code, desc, lds))
        code, desc, lds, nw = gen_k2(stamps=True, xcdmap=0); ks.append(("k2_kernel", 256, 64*nw, code, desc, lds))
        open(outp, "w").write(compose(ks))

    if which == "f1":
        import importlib
        opts = sys.argv[3:]
        mod = "gen_f1"
        kw = {"prefetch": False, "stflag": "sc0 sc1"}
        st = 0
        for o in opts:
            if o.startswith("stamps"): st = int(o[6:] or 1)
            if o.startswith("mod="): mod = o[4:]
            if o == "wt1": kw["stflag"] = "sc1"
        gen_k1 = importlib.import_module(mod).gen_k1
        code, desc, lds = gen_k1(name="fused_kernel", stamps=st, **kw)
        open(outp, "w").write(compose([("fused_kernel", 256, 512, code, desc, lds)]))

    if which == "single":
        import importlib
        opts = sys.argv[3:]
        mod = "gen_f1"
        kw = {"prefetch": False, "stflag": "sc0 sc1"}
        st = 0
        for o in opts:
            if o.startswith("stamps"): st = int(o[6:] or 1)
            if o.startswith("mod="): mod = o[4:]
        NAME = "parallel_sum__ssm_conv_s5__dense_activation_gelu__prompt_kernel"
        gen_k1 = importlib.import_module(mod).gen_k1
        code, desc, lds = gen_k1(name=NAME, stamps=st, **kw)
        s = compose([(NAME, 256, 512, code, desc, lds)])
        s = s.replace("; @launch kernel=%s grid" % NAME, "; @launch grid")
        open(outp, "w").write(s)
```

```python
import re

REG_RE = re.compile(r'(?<![\w.])([vas])(?:\[(\d+):(\d+)\]|(\d+))(?![\w])')
SPECIAL = ('vcc', 'exec', 'm0', 'scc')


def regs_of(tok):
    tok = tok.strip()
    neg = tok.lstrip('-')
    if neg.startswith('abs(') or neg.startswith('|'):
        neg = neg.replace('abs(', '').replace(')', '').replace('|', '')
    out = []
    m = REG_RE.fullmatch(neg)
    if m:
        k = m.group(1)
        if m.group(4) is not None:
            out.append((k, int(m.group(4))))
        else:
            for i in range(int(m.group(2)), int(m.group(3)) + 1):
                out.append((k, i))
        return out
    if neg in ('vcc', 'vcc_lo', 'vcc_hi'):
        return [('x', 'vcc')]
    if neg in ('exec', 'exec_lo', 'exec_hi'):
        return [('x', 'exec')]
    if neg == 'm0':
        return [('x', 'm0')]
    return []


TRANS = ('v_exp_f32', 'v_log_f32', 'v_rcp_f32', 'v_rsq_f32', 'v_sqrt_f32', 'v_sin_f32', 'v_cos_f32',
         'v_rcp_iflag_f32')
MFMA_PASSES = {'v_mfma_f32_4x4x4_16b_bf16': 2, 'v_mfma_f32_32x32x16_bf16': 8, 'v_mfma_f32_16x16x32_bf16': 4}
RMW_DST = ('v_fmac_f32', 'v_dot2c_f32_bf16', 'v_pk_fmac_f16', 'v_writelane_b32', 'v_mac_f32')


class Ins:
    __slots__ = ('text', 'op', 'kind', 'wr', 'rd', 'srcc', 'srcab', 'dpp', 'lds_dma', 'comment', 'nowaitregs')

    def __init__(self, text):
        self.text = text
        body = text.split(';')[0].strip()
        parts = body.split(None, 1)
        op = parts[0]
        self.op = op
        rest = parts[1] if len(parts) > 1 else ''
        ops = []
        cur = ''
        depth = 0
        for ch in rest:
            if ch in '[(':
                depth += 1
            if ch in '])':
                depth -= 1
            if ch == ',' and depth == 0:
                ops.append(cur.strip())
                cur = ''
            else:
                cur += ch
        if cur.strip():
            ops.append(cur.strip())
        mods = ''
        if ops:
            sp = ops[-1].split(None, 1)
            if len(sp) > 1:
                ops[-1] = sp[0]
                mods = sp[1]
        self.wr = []
        self.rd = []
        self.srcc = []
        self.srcab = []
        self.dpp = ('row_' in mods or 'quad_perm' in mods or 'wave_' in mods or 'row_' in rest)
        self.lds_dma = False
        base = op.replace('_e32', '').replace('_e64', '').replace('_dpp', '').replace('_sdwa', '')
        R = regs_of
        if op.startswith('v_mfma'):
            self.kind = 'mfma'
            self.wr = R(ops[0])
            self.srcab = R(ops[1]) + R(ops[2])
            self.srcc = R(ops[3])
            self.rd = self.srcab + self.srcc
        elif op.startswith('v_cmp'):
            self.kind = 'valu'
            self.wr = R(ops[0])
            if op.startswith('v_cmpx'):
                self.wr += [('x', 'exec')]
            for o in ops[1:]:
                self.rd += R(o)
        elif base in ('v_readfirstlane_b32', 'v_readlane_b32'):
            self.kind = 'valu'
            self.wr = R(ops[0])
            for o in ops[1:]:
                self.rd += R(o)
        elif base.startswith('v_permlane') and 'swap' in base:
            self.kind = 'valu'
            self.wr = R(ops[0]) + R(ops[1])
            self.rd = R(ops[0]) + R(ops[1])
        elif base in ('v_add_co_u32', 'v_sub_co_u32', 'v_addc_co_u32', 'v_subb_co_u32', 'v_subrev_co_u32',
                      'v_mad_u64_u32', 'v_div_scale_f32'):
            self.kind = 'valu'
            self.wr = R(ops[0]) + R(ops[1])
            for o in ops[2:]:
                self.rd += R(o)
        elif op.startswith('v_'):
            self.kind = 'trans' if base in TRANS else 'valu'
            self.wr = R(ops[0])
            for o in ops[1:]:
                self.rd += R(o)
            if base in RMW_DST or base.startswith('v_fmac') or base.startswith('v_dot2c'):
                self.rd += R(ops[0])
            if self.dpp or 'op_sel' in mods and False:
                self.rd += R(ops[0])
        elif op.startswith('ds_'):
            self.kind = 'ds'
            if op.startswith('ds_read') or op.startswith('ds_bpermute') or op.startswith('ds_permute') or op.startswith('ds_swizzle'):
                self.wr = R(ops[0])
                for o in ops[1:]:
                    self.rd += R(o)
            else:
                for o in ops:
                    self.rd += R(o)
        elif op.startswith('buffer_') or op.startswith('global_'):
            self.kind = 'vmem'
            lds = bool(re.search(r'\blds\b', mods)) or '_lds_' in op
            self.lds_dma = lds
            if 'load' in op and not lds:
                self.wr = R(ops[0])
                if '_d16' in op:
                    self.rd += R(ops[0])
                for o in ops[1:]:
                    self.rd += R(o)
            elif 'atomic' in op and re.search(r'\bsc0\b', mods):
                if op.startswith('buffer_'):
                    self.wr = R(ops[0])
                    for o in ops:
                        self.rd += R(o)
                else:
                    self.wr = R(ops[0])
                    for o in ops[1:]:
                        self.rd += R(o)
            else:
                for o in ops:
                    self.rd += R(o)
            if lds:
                self.rd.append(('x', 'm0'))
        elif op.startswith('s_load') or op.startswith('s_buffer_load') or op in ('s_memtime', 's_memrealtime'):
            self.kind = 'smem'
            self.wr = R(ops[0])
            for o in ops[1:]:
                self.rd += R(o)
        elif op.startswith('s_'):
            self.kind = 'salu'
            nodst = ('s_cmp', 's_waitcnt', 's_barrier', 's_branch', 's_cbranch', 's_nop', 's_endpgm', 's_sleep',
                     's_setprio', 's_bitcmp', 's_setreg', 's_sethalt', 's_sendmsg')
            if any(op.startswith(p) for p in nodst):
                for o in ops:
                    self.rd += R(o)
            else:
                self.wr = R(ops[0])
                for o in ops[1:]:
                    self.rd += R(o)
                if 'saveexec' in op:
                    self.wr.append(('x', 'exec'))
                    self.rd.append(('x', 'exec'))
                if op.startswith('s_addk') or op.startswith('s_mulk'):
                    self.rd += R(ops[0])
        else:
            raise ValueError('unknown instruction ' + text)


def is_valu(i):
    return i.kind in ('valu', 'trans')


class Prog:
    def __init__(self):
        self.items = []

    def I(self, text):
        for t in text.strip().split('\n'):
            t = t.strip()
            if not t:
                continue
            if t.startswith(';'):
                self.items.append(t)
            else:
                self.items.append(Ins(t))

    __call__ = I

    def label(self, name):
        self.items.append(name + ':')

    def raw(self, text):
        self.items.append(text)

    def mark(self, name):
        self.items.append(';@mark ' + name)

    def waitvm(self, name, lgkm=True):
        self.items.append(';@waitvm ' + name + (' lgkm' if lgkm else ''))

    def nocount(self):
        self.items.append(';@nocount')

    def extend(self, other):
        self.items += other.items


def need_states(prev, cur):
    n = 0
    pw = set(prev.wr)
    cr = set(cur.rd)
    cw = set(cur.wr)
    if prev.kind == 'mfma':
        p = MFMA_PASSES[prev.op]
        if cur.kind == 'mfma':
            if pw & set(cur.srcc):
                if set(prev.wr) == set(cur.srcc) and prev.op == cur.op:
                    n = max(n, 0)
                else:
                    n = max(n, p + 2)
            if pw & set(cur.srcab):
                n = max(n, p + 4)
            if (pw & cw) and not (pw & set(cur.srcc)):
                n = max(n, p + 2)
        else:
            if cur.kind in ('valu', 'trans', 'vmem', 'ds'):
                if pw & (cr | cw):
                    n = max(n, p + 4)
                if is_valu(cur) and (set(prev.srcc) & cw):
                    n = max(n, p - 1)
    elif is_valu(prev):
        vw = {r for r in pw if r[0] in 'va'}
        sw = {r for r in pw if r[0] == 's' or r == ('x', 'vcc')}
        if cur.kind == 'mfma':
            if vw & cr:
                n = max(n, 2)
            if ('x', 'exec') in pw:
                n = max(n, 4)
        if prev.kind == 'trans' and is_valu(cur) and (vw & (cr | cw)):
            n = max(n, 1)
        if prev.kind == 'trans' and cur.kind in ('mfma', 'vmem', 'ds') and (vw & cr):
            n = max(n, 2)
        if is_valu(cur):
            if sw & cr:
                n = max(n, 2)
                if cur.op.startswith('v_readlane') or cur.op.startswith('v_writelane'):
                    n = max(n, 4)
            if cur.dpp and (vw & cr):
                n = max(n, 2)
            if cur.op.startswith('v_permlane') and (vw & cr):
                n = max(n, 2)
            if (cur.op.startswith('v_readfirstlane') or cur.op.startswith('v_readlane')) and (vw & cr):
                n = max(n, 1)
            if ('x', 'exec') in pw:
                n = max(n, 5 if cur.dpp else (4 if cur.op.startswith('v_readlane') or cur.op.startswith('v_readfirstlane') or cur.op.startswith('v_permlane') else 2))
        if cur.kind == 'vmem' and (sw & cr):
            n = max(n, 5)
        if cur.kind in ('salu', 'smem') and (sw & cr):
            n = max(n, 3)
        if cur.kind in ('salu',) and cur.op.startswith('s_cbranch_vcc') and ('x', 'vcc') in pw:
            n = max(n, 5)
        if cur.kind in ('salu',) and cur.op.startswith('s_cbranch_exec') and ('x', 'exec') in pw:
            n = max(n, 5)
    elif prev.kind == 'vmem':
        if ('store' in prev.op or 'atomic' in prev.op) and ('x3' in prev.op or 'x4' in prev.op or 'cmpswap' in prev.op):
            if cw & {r for r in prev.rd if r[0] in 'va'}:
                n = max(n, 2)
    elif prev.kind == 'ds':
        if prev.op.startswith('ds_write') and ('b128' in prev.op or 'b96' in prev.op or 'b64' in prev.op):
            if is_valu(cur) and (cw & {r for r in prev.rd if r[0] in 'va'}):
                n = max(n, 2)
    elif prev.kind == 'salu':
        if ('x', 'm0') in pw and (cur.lds_dma or cur.op.startswith('s_sendmsg')):
            n = max(n, 1)
    return n


MAXWIN = 20


def finalize(prog, check_only=False):
    out = []
    hist = []
    states = 0
    vm_issued = 0
    vm_done = 0
    lg_issued = 0
    lg_done = 0
    smem_pending = False
    pend_vm = {}
    pend_lg = {}
    pend_sm = set()
    carry = False
    marks = {}
    snaps = {}
    seen_labels = set()
    after_uncond = False
    nocount = 0
    nocount_next = False
    marks_nc = {}

    def emit(txt):
        out.append('    ' + txt)

    def wait(vm=None, lg=None):
        nonlocal vm_done, lg_done, smem_pending, states
        parts = []
        if vm is not None:
            n = min(vm, 63)
            parts.append('vmcnt(%d)' % n)
            vm_done = max(vm_done, vm_issued - n)
        if lg is not None:
            n = min(lg, 15)
            parts.append('lgkmcnt(%d)' % n)
            if n == 0:
                smem_pending = False
                pend_sm.clear()
                lg_done = lg_issued
            elif not smem_pending:
                lg_done = max(lg_done, lg_issued - n)
        emit('s_waitcnt ' + ' '.join(parts))
        states += 1
        purge()

    def purge():
        for r in [r for r, i in pend_vm.items() if i < vm_done]:
            del pend_vm[r]
        for r in [r for r, i in pend_lg.items() if i < lg_done]:
            del pend_lg[r]

    def flush_all():
        vm = 0 if pend_vm else None
        lg = 0 if (pend_lg or pend_sm) else None
        if pend_vm:
            vm = vm_issued - (max(pend_vm.values()) + 1)
        if vm is not None or lg is not None:
            wait(vm, lg)

    for it in prog.items:
        if isinstance(it, str):
            s = it.strip()
            if s == ';@carry':
                carry = True
                continue
            if s.startswith(';@mark'):
                marks[s.split()[1]] = (vm_issued, nocount)
                continue
            if s == ';@nocount':
                nocount_next = True
                continue
            if s.startswith(';@waitvm'):
                tk = s.split()
                mi, mn = marks[tk[1]]
                n = (vm_issued - mi) - (nocount - mn)
                assert n >= 0
                lg = 0 if 'lgkm' in tk else None
                parts = ['vmcnt(%d)' % min(n, 63)]
                vm_done = max(vm_done, vm_issued - min(n, 63))
                if lg is not None:
                    parts.append('lgkmcnt(0)')
                    smem_pending = False
                    pend_sm.clear()
                    lg_done = lg_issued
                emit('s_waitcnt ' + ' '.join(parts))
                states += 1
                purge()
                continue
            if s.endswith(':') and not s.startswith(';'):
                if not carry:
                    flush_all()
                carry = False
                out.append(s)
                lab = s[:-1]
                merged = list(hist) if not after_uncond else []
                for snap in snaps.get(lab, []):
                    for (pi, age) in snap:
                        merged.append((pi, states - age))
                hist = merged
                after_uncond = False
                seen_labels.add(lab)
                continue
            out.append('    ' + s)
            continue
        ins = it
        if ins.op == 's_waitcnt':
            m = re.search(r'vmcnt\((\d+)\)', ins.text)
            if m:
                vm_done = max(vm_done, vm_issued - int(m.group(1)))
            m = re.search(r'lgkmcnt\((\d+)\)', ins.text)
            if m:
                n = int(m.group(1))
                if n == 0:
                    smem_pending = False
                    pend_sm.clear()
                    lg_done = lg_issued
                elif not smem_pending:
                    lg_done = max(lg_done, lg_issued - n)
            purge()
            emit(ins.text)
            states += 1
            continue
        if ins.op.startswith('s_cbranch') or ins.op == 's_branch' or ins.op == 's_endpgm':
            if ins.op != 's_endpgm' and not carry:
                flush_all()
            carry = False
        touched = set(ins.rd) | set(ins.wr)
        vm = None
        lg = None
        for r in touched:
            if r in pend_vm:
                if ins.kind == 'vmem' and r in ins.wr and r not in ins.rd:
                    continue
                need = vm_issued - (pend_vm[r] + 1)
                vm = need if vm is None else min(vm, need)
            if r in pend_lg:
                if ins.kind == 'ds' and r in ins.wr and r not in ins.rd:
                    continue
                need = lg_issued - (pend_lg[r] + 1)
                if smem_pending:
                    need = 0
                lg = need if lg is None else min(lg, need)
            if r in pend_sm:
                lg = 0
        if vm is not None or lg is not None:
            wait(vm, lg)
        req = 0
        for (p, at) in hist:
            dist = states - at - 1
            n = need_states(p, ins)
            if n - dist > req:
                req = n - dist
        while req > 0:
            k = min(req, 16)
            emit('s_nop %d' % (k - 1))
            states += k
            req -= k
        emit(ins.text)
        if ins.op.startswith('s_cbranch') or ins.op == 's_branch':
            tgt = ins.text.split()[1].strip()
            snaps.setdefault(tgt, []).append([(pi, states + 1 - at) for (pi, at) in hist])
            if tgt in seen_labels:
                worst = 0
                for (pi, at) in hist:
                    if pi.kind == 'mfma':
                        worst = max(worst, MFMA_PASSES[pi.op] + 4 - (states - at))
                assert worst <= 0, 'MFMA hazard across backward branch ' + ins.text
        after_uncond = ins.op in ('s_branch', 's_endpgm')
        hist.append((ins, states))
        if ins.op == 's_nop':
            states += int(ins.text.split()[1]) + 1
        else:
            states += 1
        hist = [(p, at) for (p, at) in hist if states - at <= MAXWIN]
        if ins.kind == 'vmem':
            if nocount_next:
                for r in ins.wr:
                    pend_vm[r] = vm_issued - 1
                nocount_next = False
            else:
                for r in ins.wr:
                    pend_vm[r] = vm_issued
                vm_issued += 1
        elif ins.kind == 'ds':
            for r in ins.wr:
                pend_lg[r] = lg_issued
            lg_issued += 1
        elif ins.kind == 'smem':
            for r in ins.wr:
                pend_sm.add(r)
            smem_pending = True
            lg_issued += 1
    return '\n'.join(out) + '\n'


def interleave(main, side, ratio_slots):
    out = []
    j = 0
    for i, m in enumerate(main):
        out.append(m)
        k = ratio_slots(i, m)
        for _ in range(k):
            if j < len(side):
                out.append(side[j])
                j += 1
    out += side[j:]
    return out
```
